```python
import torch

def _softmax(x, axis=-1):
    return torch.softmax(x, dim=axis)
def _gelu(x):
    return torch.nn.functional.gelu(x, approximate="tanh")
def _silu(x):
    return torch.nn.functional.silu(x)
def _sigmoid(x):
    return torch.sigmoid(x)
def _layernorm(x, axis=-1, eps=1e-5):
    m = x.mean(dim=axis, keepdim=True)
    v = x.var(dim=axis, keepdim=True, unbiased=False)
    return (x - m) / torch.sqrt(v + eps)
def _scatter_add(tgt, idx, src, axis=0):
    return tgt.clone().index_add_(axis, idx, src)
def _segment_sum(src, seg, n):
    out = torch.zeros((n,) + src.shape[1:], dtype=src.dtype)
    return out.index_add_(0, seg, src)
def _pad(x, pw):
    flat = tuple(v for pair in reversed(pw) for v in pair)
    return torch.nn.functional.pad(x, flat)

kernel_name = 'parallel_sum__mha_block__glu_gated_glu__prompt'

def setup_inputs():

    _w = (lambda a: (lambda t: t.to(torch.bfloat16) if t.is_floating_point() else t)(torch.as_tensor(a)))
    def _A_setup():
        B, S, D, H = 1, 2048, 1024, 32
        return {
            "x": _w((lambda *s: torch.randn(*s, dtype=torch.bfloat16) * 0.05)(B, S, D)),
            "wqkv": _w((lambda *s: torch.randn(*s, dtype=torch.bfloat16) * 0.05)(D, 3 * D)),
            "wo": _w((lambda *s: torch.randn(*s, dtype=torch.bfloat16) * 0.05)(D, D)),
        }
    _A_in = _A_setup()

    def _B_setup():
        B, S, D, F = 1, 2048, 1024, 3584
        return {
            "x": _w((lambda *s: torch.randn(*s, dtype=torch.bfloat16) * 0.05)(B, S, D)),
            "w_gate": _w((lambda *s: torch.randn(*s, dtype=torch.bfloat16) * 0.05)(D, F)),
            "w_up": _w((lambda *s: torch.randn(*s, dtype=torch.bfloat16) * 0.05)(D, F)),
            "w_down": _w((lambda *s: torch.randn(*s, dtype=torch.bfloat16) * 0.05)(F, D)),
        }
    _B_in = _B_setup()

    return {
        "A_x": _A_in["x"],
        "A_wqkv": _A_in["wqkv"],
        "A_wo": _A_in["wo"],
        "B_x": _B_in["x"],
        "B_w_gate": _B_in["w_gate"],
        "B_w_up": _B_in["w_up"],
        "B_w_down": _B_in["w_down"],
    }

def reference(A_x, A_wqkv, A_wo, B_x, B_w_gate, B_w_up, B_w_down):
    def _A_ref(x, wqkv, wo):
        B, S, D = x.shape
        H = 32
        Dh = D // H
        qkv = (lambda x, *d: x.permute(*d))((x @ wqkv).reshape(B, S, 3, H, Dh), 2, 0, 3, 1, 4)
        q, k, v = qkv[0], qkv[1], qkv[2]
        scores = torch.einsum("bhqd,bhkd->bhqk", q, k) * (Dh ** -0.5)
        p = _softmax(scores, axis=-1)
        o = torch.einsum("bhqk,bhkd->bhqd", p, v)
        return (lambda x, *d: x.permute(*d))(o, 0, 2, 1, 3).reshape(B, S, D) @ wo

    def _B_ref(x, w_gate, w_up, w_down):
        g = torch.einsum("bsd,df->bsf", x, w_gate)
        u = torch.einsum("bsd,df->bsf", x, w_up)
        h = _sigmoid(g) * u
        return torch.einsum("bsf,fd->bsd", h, w_down)

    x = A_x
    xn = _layernorm(x, axis=-1)
    return x + _A_ref(xn, A_wqkv, A_wo) + _B_ref(xn, B_w_gate, B_w_up, B_w_down)
```

```python
import sys, struct, math

NAME = "parallel_sum__mha_block__glu_gated_glu__prompt"
S, D, H, DH, F = 2048, 1024, 32, 32, 3584
KA_X, KA_WQKV, KA_WO, KA_BX, KA_WG, KA_WU, KA_WD, KA_OUT, KA_DBG, KA_WS = [8 * i for i in range(10)]
WS_XN = 0
XN_BYTES = 64 * 128 * 512
WS_QKV = 4 << 20
QKV_BYTES = 96 * 64 * 2048
WS_ACT = 16 << 20
ACT_MT = 576 * 512
ACT_BYTES = 64 * ACT_MT


def f32(x):
    return struct.unpack("<I", struct.pack("<f", x))[0]


class Asm:
    def __init__(self):
        self.lines = []

    def __call__(self, s):
        for ln in s.split("\n"):
            ln = ln.strip()
            if ln:
                self.lines.append(("" if ln.endswith(":") else "    ") + ln)

    def label(self, l):
        self.lines.append(l + ":")

    def c(self, s):
        self.lines.append("    ; " + s)

    def text(self):
        return "\n".join(self.lines) + "\n"


def kernel_head(a, name):
    a.lines.append(".text")
    a.lines.append(".globl %s" % name)
    a.lines.append(".p2align 8")
    a.lines.append(".type %s,@function" % name)
    a.label(name)


def kernel_desc(a, name, vgpr, accum, sgpr=102):
    a.lines.append('.section .rodata,"a"')
    a.lines.append(".p2align 6")
    a.lines.append(".amdhsa_kernel %s" % name)
    a.lines.append("  .amdhsa_next_free_vgpr %d" % vgpr)
    a.lines.append("  .amdhsa_next_free_sgpr %d" % sgpr)
    a.lines.append("  .amdhsa_accum_offset %d" % accum)
    a.lines.append("  .amdhsa_group_segment_fixed_size 0")
    a.lines.append("  .amdhsa_kernarg_size 80")
    a.lines.append("  .amdhsa_user_sgpr_count 2")
    a.lines.append("  .amdhsa_user_sgpr_kernarg_segment_ptr 1")
    a.lines.append("  .amdhsa_system_sgpr_workgroup_id_x 1")
    a.lines.append("  .amdhsa_float_denorm_mode_32 3")
    a.lines.append(".end_amdhsa_kernel")


def srd(a, d, lo, hi, nbytes, off=0):
    if off:
        a("s_add_u32 s%d, s%d, 0x%x" % (d, lo, off))
        a("s_addc_u32 s%d, s%d, 0" % (d + 1, hi))
    else:
        a("s_mov_b32 s%d, s%d" % (d, lo))
        a("s_mov_b32 s%d, s%d" % (d + 1, hi))
    a("s_mov_b32 s%d, 0x%x" % (d + 2, nbytes))
    a("s_mov_b32 s%d, 0x00020000" % (d + 3))


def R(kind, base, n=1):
    if n == 1:
        return "%s%d" % (kind, base)
    return "%s[%d:%d]" % (kind, base, base + n - 1)


def interleave(a, mfmas, fillers):
    for s in fillers.get(-1, []):
        a(s)
    for i, m in enumerate(mfmas):
        a(m)
        for s in fillers.get(i, []):
            a(s)


def gen_ln(a):
    name = "ln_kernel"
    kernel_head(a, name)
    a("""
    s_cmp_ge_u32 s2, 256
    s_cbranch_scc1 L_ln_end
    s_load_dwordx2 s[4:5], s[0:1], %d
    s_load_dwordx2 s[6:7], s[0:1], %d
    v_and_b32 v1, 63, v0            ; lane
    v_lshrrev_b32 v2, 6, v0         ; wave
    v_and_b32 v3, 7, v1             ; row in block
    v_lshrrev_b32 v4, 3, v1         ; kq
    v_lshlrev_b32 v5, 4, v2         ; wave*16
    v_add_u32 v5, v5, v4            ; kg (i=0)
    s_lshl_b32 s3, s2, 3            ; first row
    v_add_u32 v6, s3, v3            ; global row
    v_lshlrev_b32 v7, 11, v6        ; row*2048
    v_lshlrev_b32 v8, 4, v5         ; kg*16
    v_add_u32 v7, v7, v8            ; load offset
    s_waitcnt lgkmcnt(0)
    """ % (KA_X, KA_WS))
    srd(a, 8, 4, 5, S * D * 2)
    srd(a, 12, 6, 7, XN_BYTES, WS_XN)
    a("""
    buffer_load_dwordx4 v[16:19], v7, s[8:11], 0 offen
    buffer_load_dwordx4 v[20:23], v7, s[8:11], 0 offen offset:128
    v_lshrrev_b32 v9, 5, v6
    v_lshlrev_b32 v9, 7, v9
    v_add_u32 v9, v9, v5
    v_lshlrev_b32 v9, 9, v9
    v_and_b32 v10, 31, v6
    v_lshlrev_b32 v10, 4, v10
    v_add_u32 v9, v9, v10
    v_lshlrev_b32 v11, 5, v3        ; row*32
    v_lshlrev_b32 v12, 2, v2
    v_add_u32 v12, v11, v12
    s_waitcnt vmcnt(0)
    """)
    for i in range(8):
        a("v_lshlrev_b32 v%d, 16, v%d" % (32 + 2 * i, 16 + i))
        a("v_and_b32 v%d, 0xffff0000, v%d" % (33 + 2 * i, 16 + i))

    def reduce_rows(src, lds_off):
        a("""
        s_nop 1
        v_add_f32_dpp v%d, v%d, v%d row_ror:8 row_mask:0xf bank_mask:0xf
        v_mov_b32 v14, v%d
        s_nop 1
        v_permlane16_swap_b32 v%d, v14
        s_nop 1
        v_add_f32 v%d, v%d, v14
        v_mov_b32 v14, v%d
        s_nop 1
        v_permlane32_swap_b32 v%d, v14
        s_nop 1
        v_add_f32 v%d, v%d, v14
        ds_write_b32 v12, v%d offset:%d
        s_waitcnt lgkmcnt(0)
        s_barrier
        ds_read_b128 v[48:51], v11 offset:%d
        ds_read_b128 v[52:55], v11 offset:%d
        s_waitcnt lgkmcnt(0)
        v_add_f32 v48, v48, v49
        v_add_f32 v50, v50, v51
        v_add_f32 v52, v52, v53
        v_add_f32 v54, v54, v55
        v_add_f32 v48, v48, v50
        v_add_f32 v52, v52, v54
        v_add_f32 v%d, v48, v52
        """ % (src, src, src, src, src, src, src, src, src, src, src, src, lds_off, lds_off, lds_off + 16, src))

    a("v_add_f32 v13, v32, v33")
    for i in range(2, 16):
        a("v_add_f32 v13, v13, v%d" % (32 + i))
    reduce_rows(13, 0)
    a("v_mul_f32 v13, 0x%x, v13        ; mean (fp32)" % f32(1.0 / D))
    a("v_sub_f32 v56, v32, v13")
    a("v_mul_f32 v15, v56, v56")
    for i in range(1, 16):
        a("v_sub_f32 v56, v%d, v13" % (32 + i))
        a("v_fmac_f32 v15, v56, v56")
    reduce_rows(15, 256)
    a("""
    v_mul_f32 v15, 0x%x, v15        ; var
    v_cvt_pk_bf16_f32 v13, v13, v15 ; lo = mean bf16, hi = var bf16
    v_and_b32 v15, 0xffff0000, v13
    v_lshlrev_b32 v13, 16, v13      ; mean_bf
    v_add_f32 v15, 0x%x, v15        ; + eps
    v_cvt_pk_bf16_f32 v15, v15, v15
    v_and_b32 v15, 0xffff0000, v15
    v_sqrt_f32 v15, v15
    s_nop 0
    v_cvt_pk_bf16_f32 v15, v15, v15
    v_and_b32 v15, 0xffff0000, v15  ; s (bf16)
    v_rcp_f32 v14, v15
    s_nop 0
    ; one newton step on rcp: r = r*(2 - s*r)
    v_fma_f32 v56, -v15, v14, 1.0
    v_fma_f32 v14, v14, v56, v14
    """ % (f32(1.0 / D), f32(1e-5)))
    for i in range(8):
        x0, x1 = 32 + 2 * i, 33 + 2 * i
        a("v_sub_f32 v%d, v%d, v13" % (x0, x0))
        a("v_sub_f32 v%d, v%d, v13" % (x1, x1))
        a("v_cvt_pk_bf16_f32 v56, v%d, v%d" % (x0, x1))
        a("v_lshlrev_b32 v%d, 16, v56" % x0)
        a("v_and_b32 v%d, 0xffff0000, v56" % x1)
        for x in (x0, x1):
            a("v_mul_f32 v57, v%d, v14" % x)
            a("v_fma_f32 v58, -v57, v15, v%d" % x)
            a("v_fma_f32 v%d, v58, v14, v57" % x)
        a("v_cvt_pk_bf16_f32 v%d, v%d, v%d" % (16 + i, x0, x1))
    a("""
    v_add_u32 v10, 0x1000, v9
    buffer_store_dwordx4 v[16:19], v9, s[12:15], 0 offen
    buffer_store_dwordx4 v[20:23], v10, s[12:15], 0 offen
    L_ln_end:
    s_endpgm
    """)
    kernel_desc(a, name, 64, 64, 32)
    return "; @launch kernel=%s grid=(256,1,1) block=(512,1,1) lds=512" % name


G1_X = 0
G1_Q = 16384
G1_G = G1_Q + 6144
G1_U = G1_G + 7168 + 128
G1_STAGE = G1_U + 7168
G1_NST = 4
G1_LDS = G1_STAGE * G1_NST


def gen_gemm1(a):
    name = "gemm1_kernel"
    kernel_head(a, name)
    a("""
    s_cmp_ge_u32 s2, 256
    s_cbranch_scc1 L_g1_end
    s_load_dwordx2 s[4:5], s[0:1], %d
    s_load_dwordx2 s[6:7], s[0:1], %d
    s_load_dwordx2 s[8:9], s[0:1], %d
    s_load_dwordx2 s[10:11], s[0:1], %d
    v_lshrrev_b32 v1, 6, v0
    s_and_b32 s3, s2, 7
    v_readfirstlane_b32 s14, v1      ; wave id
    s_lshr_b32 s17, s2, 3
    s_and_b32 s12, s17, 3
    s_lshl_b32 s3, s3, 2
    s_add_u32 s12, s12, s3           ; j
    s_lshr_b32 s13, s17, 2           ; mb
    s_lshr_b32 s15, s14, 1           ; wm
    s_and_b32 s16, s14, 1            ; wn
    v_and_b32 v0, 63, v0             ; lane
    s_waitcnt lgkmcnt(0)
    """ % (KA_WQKV, KA_WG, KA_WU, KA_WS))
    srd(a, 20, 10, 11, XN_BYTES, WS_XN)
    srd(a, 64, 10, 11, QKV_BYTES, WS_QKV)
    srd(a, 68, 10, 11, ACT_BYTES, WS_ACT)
    a("""
    s_lshl_b32 s17, s13, 3
    s_lshl_b32 s18, s14, 1
    s_add_u32 s17, s17, s18
    s_lshl_b32 s17, s17, 16
    v_lshlrev_b32 v15, 4, v0         ; lane*16
    v_add_u32 v1, s17, v15
    v_add_u32 v2, 0x10000, v1
    s_mov_b32 s59, 0
    s_lshl_b32 s60, s14, 12
    """)
    for i in range(5):
        sd = 24 + 4 * i
        a.c("W slot %d" % i)
        a("s_mul_i32 s17, s14, 5")
        a("s_add_u32 s17, s17, %d          ; idx" % i)
        a("s_cmp_lt_u32 s17, 6")
        a("s_cbranch_scc1 L_g1_q%d" % i)
        a("s_cmp_lt_u32 s17, 13")
        a("s_cbranch_scc1 L_g1_g%d" % i)
        a("s_sub_u32 s17, s17, 13")
        a("s_mov_b32 s%d, s8" % sd)
        a("s_mov_b32 s%d, s9" % (sd + 1))
        a("s_lshl_b32 s18, s17, 10")
        a("s_add_u32 s%d, s18, %d" % (54 + i, G1_U))
        a("s_branch L_g1_gu%d" % i)
        a.label("L_g1_g%d" % i)
        a("s_sub_u32 s17, s17, 6")
        a("s_mov_b32 s%d, s6" % sd)
        a("s_mov_b32 s%d, s7" % (sd + 1))
        a("s_lshl_b32 s18, s17, 10")
        a("s_add_u32 s%d, s18, %d" % (54 + i, G1_G))
        a.label("L_g1_gu%d" % i)
        a("s_mov_b32 s%d, 0x%x" % (sd + 2, D * F * 2))
        a("s_mov_b32 s%d, %d" % (49 + i, 32 * F * 2))
        a("s_lshl_b32 s18, s17, 6")
        a("v_add_u32 v8, s18, v0")
        a("v_mul_u32_u24 v9, %d, v8" % 4682)
        a("v_lshrrev_b32 v9, 16, v9")
        a("v_mul_u32_u24 v10, 14, v9")
        a("v_sub_u32 v10, v8, v10")
        a("v_mul_u32_u24 v9, %d, v9" % (F * 2))
        a("v_lshlrev_b32 v10, 4, v10")
        a("s_mul_i32 s18, s12, 224")
        a("v_add3_u32 v%d, v9, v10, s18" % (3 + i))
        a("s_branch L_g1_d%d" % i)
        a.label("L_g1_q%d" % i)
        a("s_mov_b32 s%d, s4" % sd)
        a("s_mov_b32 s%d, s5" % (sd + 1))
        a("s_lshl_b32 s18, s17, 10")
        a("s_add_u32 s%d, s18, %d" % (54 + i, G1_Q))
        a("s_mov_b32 s%d, 0x%x" % (sd + 2, D * 3 * D * 2))
        a("s_mov_b32 s%d, %d" % (49 + i, 32 * 3 * D * 2))
        a("s_lshl_b32 s18, s17, 6")
        a("v_add_u32 v8, s18, v0")
        a("v_mul_u32_u24 v9, %d, v8" % 5462)
        a("v_lshrrev_b32 v9, 16, v9")
        a("v_mul_u32_u24 v10, 12, v9")
        a("v_sub_u32 v10, v8, v10")
        a("v_mul_u32_u24 v9, %d, v9" % (3 * D * 2))
        a("v_lshlrev_b32 v10, 4, v10")
        a("s_mul_i32 s18, s12, 192")
        a("v_add3_u32 v%d, v9, v10, s18" % (3 + i))
        a.label("L_g1_d%d" % i)
        a("s_mov_b32 s%d, 0x00020000" % (sd + 3))
        a("s_mov_b32 s%d, 0" % (44 + i))
    assert all((c * 4682) >> 16 == c // 14 for c in range(448))
    assert all((c * 5462) >> 16 == c // 12 for c in range(384))

    def dma_list(slot):
        base = slot * G1_STAGE
        out = []
        out.append(["s_add_u32 m0, s60, %d" % (base + G1_X), "s_nop 0",
                    "buffer_load_dwordx4 v1, s[20:23], s59 offen lds"])
        out.append(["buffer_load_dwordx4 v1, s[20:23], s59 offen offset:1024 lds"])
        out.append(["s_add_u32 m0, s60, %d" % (base + G1_X + 2048), "s_nop 0",
                    "buffer_load_dwordx4 v2, s[20:23], s59 offen lds"])
        out.append(["buffer_load_dwordx4 v2, s[20:23], s59 offen offset:1024 lds",
                    "s_add_u32 s59, s59, 2048"])
        for i in range(5):
            sd = 24 + 4 * i
            out.append(["s_add_u32 m0, s%d, %d" % (54 + i, base), "s_nop 0",
                        "buffer_load_dwordx4 v%d, s[%d:%d], s%d offen lds" % (3 + i, sd, sd + 3, 44 + i),
                        "s_add_u32 s%d, s%d, s%d" % (44 + i, 44 + i, 49 + i)])
        return out

    for st in range(G1_NST):
        for d in dma_list(st):
            for s in d:
                a(s)
    WIN = 2 * G1_STAGE
    a("""
    s_lshl_b32 s17, s15, 13          ; wm*8192
    v_add_u32 v8, s17, v15
    v_add_u32 v9, %d, v8
    v_lshrrev_b32 v10, 5, v0         ; hh
    v_lshlrev_b32 v10, 3, v10        ; 8*hh
    v_bfe_u32 v11, v0, 2, 2          ; (i>>2)
    v_add_u32 v10, v10, v11          ; row
    v_bfe_u32 v11, v0, 4, 1          ; G&1
    v_and_b32 v12, 3, v0
    v_lshlrev_b32 v12, 3, v12        ; (i&3)*8
    v_mul_u32_u24 v13, 224, v10
    v_mul_u32_u24 v14, %d, v11
    v_add3_u32 v13, v13, v14, v12    ; GLU base
    v_mul_u32_u24 v10, 192, v10
    v_lshlrev_b32 v11, 5, v11
    v_add3_u32 v10, v10, v11, v12    ; QKV base
    v_add_u32 v11, %d, v10
    v_mov_b32 v12, v13
    v_add_u32 v13, %d, v12
    """ % (WIN, G1_U - G1_G, WIN, WIN))

    def acc(t, i):
        k = t * 4 + i
        if k < 15:
            return ("v", 16 + 16 * k)
        return ("a", 16 * (k - 15))
    for k in range(240):
        a("v_mov_b32 v%d, 0" % (16 + k))
    for k in range(80):
        a("v_accvgpr_write_b32 a%d, 0" % k)

    def wfrag(st, t):
        return 80 + 36 * st + 4 * t

    def xfrag(st, i):
        return 80 + 36 * st + 20 + 4 * i

    COLS = [[("Q", 0), ("Q", 1), ("G", 0), ("G", 1), ("G", 2)],
            [("Q", 2), ("G", 3), ("G", 4), ("G", 5), ("G", 6)]]

    def reads(wn, slot, ks, st):
        win = slot // 2
        base = (slot % 2) * G1_STAGE
        out = []
        order = []
        for t in range(5):
            order.append(("w", t))
            if t < 4:
                order.append(("x", t))
        for kind, t in order:
            if kind == "x":
                off = base + G1_X + t * 2048 + ks * 1024
                out.append("ds_read_b128 %s, v%d offset:%d" % (R("a", xfrag(st, t), 4), 8 + win, off))
            else:
                ty, idx = COLS[wn][t]
                for rd in range(2):
                    row = 16 * ks + 4 * rd
                    if ty == "Q":
                        off = base + G1_Q + row * 192 + idx * 64
                        ar = 10 + win
                    else:
                        off = base + G1_G + row * 224 + idx * 32
                        ar = 12 + win
                    assert off < 65536
                    out.append("ds_read_b64_tr_b16 %s, v%d offset:%d" % (R("a", wfrag(st, t) + 2 * rd, 2), ar, off))
        return out

    def mfmas(st):
        out = []
        for t in range(5):
            for i in range(4):
                k, r = acc(t, i)
                out.append("v_mfma_f32_32x32x16_bf16 %s, %s, %s, %s" % (
                    R(k, r, 16), R("a", wfrag(st, t), 4), R("a", xfrag(st, i), 4), R(k, r, 16)))
        return out

    def stage(wn, slot, dma_prev, dma_this, vm, last=False):
        fl = {-1: ["s_waitcnt lgkmcnt(0)"]}
        rd = reads(wn, slot, 1, 1)
        for g, r in enumerate(rd):
            fl.setdefault(g, []).append(r)
        for g, d in enumerate(dma_prev):
            fl.setdefault(1 + 4 * g, []).extend(d)
        interleave(a, mfmas(0), fl)
        fl = {-1: ["s_waitcnt lgkmcnt(0)"]}
        if not last:
            fl[0] = ["s_waitcnt vmcnt(%d)" % vm, "s_barrier"]
            rd = reads(wn, (slot + 1) % G1_NST, 0, 0)
            for g, r in enumerate(rd):
                fl.setdefault(1 + g, []).append(r)
            for g, d in enumerate(dma_this):
                fl.setdefault(3 + 4 * g, []).extend(d)
        interleave(a, mfmas(1), fl)

    a("s_waitcnt vmcnt(27)")
    a("s_barrier")
    a("s_cmp_eq_u32 s16, 1")
    a("s_cbranch_scc1 L_g1_w1")
    for wn in range(2):
        if wn == 1:
            a.label("L_g1_w1")
        for r in reads(wn, 0, 0, 0):
            a(r)
        a("s_mov_b32 s61, 7")
        d = [dma_list(s) for s in range(4)]
        stage(wn, 0, [], d[0][:4], 18)
        a("s_branch L_g1_mid%d" % wn)
        a.label("L_g1_loop%d" % wn)
        stage(wn, 0, d[3][4:], d[0][:4], 18)
        a.label("L_g1_mid%d" % wn)
        stage(wn, 1, d[0][4:], d[1][:4], 18)
        stage(wn, 2, d[1][4:], d[2][:4], 18)
        stage(wn, 3, d[2][4:], d[3][:4], 18)
        a("s_sub_u32 s61, s61, 1")
        a("s_cmp_lg_u32 s61, 0")
        a("s_cbranch_scc1 L_g1_loop%d" % wn)
        stage(wn, 0, d[3][4:], [], 18)
        stage(wn, 1, [], [], 9)
        stage(wn, 2, [], [], 0)
        stage(wn, 3, [], [], 0, last=True)
        a("s_nop 15")
        a("s_mov_b32 s72, 0x%x" % f32(-math.log2(math.e)))
        a("s_mov_b32 s73, 0x%x" % f32(DH ** -0.5 * math.log2(math.e)))
        a("s_lshl_b32 s74, s13, 3")
        a("s_lshl_b32 s17, s15, 2")
        a("s_add_u32 s74, s74, s17")
        for t in range(5):
            ty, idx = COLS[wn][t]
            if ty == "Q":
                a("s_mul_i32 s75, s12, 3")
                a("s_add_u32 s75, s75, %d" % idx)
                a("s_lshl_b32 s76, s75, 6")
                a("s_add_u32 s76, s76, s74")
                a("s_lshl_b32 s76, s76, 11")
                a("s_cmp_ge_u32 s75, 32")
                a("s_cbranch_scc1 L_g1_ns%d_%d" % (wn, t))
                for i in range(4):
                    k, r = acc(t, i)
                    assert k == "v"
                    for e in range(16):
                        a("v_mul_f32 v%d, s73, v%d" % (r + e, r + e))
                a.label("L_g1_ns%d_%d" % (wn, t))
                for i in range(4):
                    k, r = acc(t, i)
                    for e in range(8):
                        a("v_cvt_pk_bf16_f32 v%d, v%d, v%d" % (r + e, r + 2 * e, r + 2 * e + 1))
                    a("buffer_store_dwordx4 %s, v15, s[64:67], s76 offen" % R("v", r, 4))
                    a("buffer_store_dwordx4 %s, v15, s[64:67], s76 offen offset:1024" % R("v", r + 4, 4))
                    if i < 3:
                        a("s_add_u32 s76, s76, 2048")
            else:
                a("s_mul_i32 s75, s12, 7")
                a("s_add_u32 s75, s75, %d" % (64 + idx))
                a("s_lshl_b32 s75, s75, 10")
                a("s_mul_i32 s76, s74, %d" % ACT_MT)
                a("s_add_u32 s76, s76, s75")
                for i in range(4):
                    k, r = acc(t, i)
                    if k == "a":
                        r2 = 16 + 16 * (i % 2)
                        a("s_nop 1")
                        for e in range(16):
                            a("v_accvgpr_read_b32 v%d, a%d" % (r2 + e, r + e))
                        r = r2
                    for e in range(8):
                        a("v_mul_f32 v%d, s72, v%d" % (r + e, r + e))
                    for e in range(8):
                        a("v_exp_f32 v%d, v%d" % (r + e, r + e))
                    for e in range(8):
                        a("v_add_f32 v%d, 1.0, v%d" % (r + e, r + e))
                    for e in range(8):
                        a("v_rcp_f32 v%d, v%d" % (r + e, r + e))
                    for e in range(8):
                        a("v_mul_f32 v%d, v%d, v%d" % (r + e, r + e, r + 8 + e))
                    for e in range(4):
                        a("v_cvt_pk_bf16_f32 v%d, v%d, v%d" % (r + 8 + e, r + 2 * e, r + 2 * e + 1))
                    a("buffer_store_dwordx4 %s, v15, s[68:71], s76 offen" % R("v", r + 8, 4))
                    if i < 3:
                        a("s_add_u32 s76, s76, %d" % ACT_MT)
        a("s_endpgm")
    a.label("L_g1_end")
    a("s_endpgm")
    kernel_desc(a, name, 256 + 152, 256, 96)
    return "; @launch kernel=%s grid=(256,1,1) block=(256,1,1) lds=%d" % (name, G1_LDS)


AT_STAGE = 16384
AT_NS = 4
AT_PRIV = AT_STAGE * AT_NS
AT_LDS = AT_PRIV + 8 * 4096


def gen_attn(a):
    name = "attn_kernel"
    kernel_head(a, name)
    Q = 8
    NEGM = 16
    SB = [32, 48]
    O = 64
    P = 80
    K = 88
    V = 96
    L = 104
    ONES = 108
    T = 112
    a("""
    s_cmp_ge_u32 s2, 256
    s_cbranch_scc1 L_at_end
    s_load_dwordx2 s[10:11], s[0:1], %d
    v_lshrrev_b32 v1, 6, v0
    s_and_b32 s3, s2, 7
    v_readfirstlane_b32 s14, v1      ; wave id
    s_lshr_b32 s17, s2, 3
    s_and_b32 s12, s17, 3
    s_lshl_b32 s3, s3, 2
    s_add_u32 s12, s12, s3           ; head
    s_lshr_b32 s13, s17, 2           ; qb
    s_lshl_b32 s13, s13, 3
    s_add_u32 s13, s13, s14          ; q m-tile
    v_and_b32 v0, 63, v0             ; lane
    v_lshlrev_b32 v1, 4, v0          ; lane*16
    s_waitcnt lgkmcnt(0)
    """ % KA_WS)
    srd(a, 20, 10, 11, QKV_BYTES, WS_QKV)
    srd(a, 24, 10, 11, ACT_BYTES, WS_ACT)
    a("""
    ; Q frags
    s_lshl_b32 s17, s12, 6
    s_add_u32 s17, s17, s13
    s_lshl_b32 s17, s17, 11
    buffer_load_dwordx4 v[%d:%d], v1, s[20:23], s17 offen
    buffer_load_dwordx4 v[%d:%d], v1, s[20:23], s17 offen offset:1024
    ; K dma voffset = (32+head)*131072 + w*1024 + lane*16
    s_add_u32 s17, s12, 32
    s_lshl_b32 s17, s17, 17
    s_lshl_b32 s18, s14, 10
    s_add_u32 s17, s17, s18
    v_add_u32 v2, s17, v1
    ; V dma voffset = (64+head)*131072 + w*1024 + (l>>5)*512 + ((l&31)^(4c))*16 , c = 2(w&1) + (l>>5)
    s_add_u32 s17, s17, 0x400000
    s_and_b32 s19, s14, 1
    s_lshl_b32 s19, s19, 1
    v_lshrrev_b32 v4, 5, v0
    v_add_u32 v5, s19, v4            ; c
    v_lshlrev_b32 v5, 2, v5          ; 4c
    v_and_b32 v6, 31, v0
    v_xor_b32 v6, v6, v5
    v_lshlrev_b32 v6, 4, v6
    v_lshlrev_b32 v4, 9, v4
    v_add3_u32 v3, v6, v4, s17
    s_mov_b32 s30, 0                 ; stage soffset
    """ % (Q, Q + 3, Q + 4, Q + 7))

    def dma(slot):
        return ["s_add_u32 m0, s18, %d" % (slot * AT_STAGE), "s_nop 0",
                "buffer_load_dwordx4 v2, s[20:23], s30 offen lds",
                "s_add_u32 m0, s18, %d" % (slot * AT_STAGE + 8192), "s_nop 0",
                "buffer_load_dwordx4 v3, s[20:23], s30 offen lds",
                "s_add_u32 s30, s30, 8192", "s_and_b32 s30, s30, 0x1ffff"]
    for st in range(3):
        for s in dma(st):
            a(s)
    a("""
    v_bfe_u32 v112, v0, 4, 1         ; s
    v_and_b32 v113, 1, v0            ; c4&1
    v_lshl_add_u32 v114, v112, 1, v113   ; c
    v_lshrrev_b32 v115, 5, v0        ; hh'
    v_bfe_u32 v116, v0, 2, 2         ; r
    v_lshl_add_u32 v116, v115, 2, v116   ; 4hh'+r
    v_lshlrev_b32 v117, 2, v114      ; 4c
    v_xor_b32 v118, v116, v117       ; key^4c  (rd=0)
    v_xor_b32 v119, 8, v118          ; rd=1
    v_bfe_u32 v113, v0, 1, 1         ; c4>>1
    v_lshlrev_b32 v113, 3, v113
    v_lshl_add_u32 v113, v114, 9, v113   ; c*512 + half*8
    v_lshl_add_u32 v4, v118, 4, v113
    v_lshl_add_u32 v5, v119, 4, v113
    ; ONES operand: lane (i = l&15, kg = l>>4): 1.0 pairs if ((i>>2)&1) == (kg&1)
    v_bfe_u32 v112, v0, 2, 1
    v_bfe_u32 v113, v0, 4, 1
    v_cmp_eq_u32 vcc, v112, v113
    v_mov_b32 v112, 0x3f803f80
    s_nop 1
    v_cndmask_b32 v%d, 0, v112, vcc
    v_cndmask_b32 v%d, 0, v112, vcc
    v_cndmask_b32 v%d, 0, v112, vcc
    v_cndmask_b32 v%d, 0, v112, vcc
    """ % (ONES, ONES + 1, ONES + 2, ONES + 3))
    for e in range(16):
        a("v_mov_b32 v%d, 0" % (O + e))
    for e in range(4):
        a("v_mov_b32 v%d, 0" % (L + e))

    def kread(slot, kt, s, areg=1, base=0):
        return "ds_read_b128 %s, v%d offset:%d" % (R("v", K + 4 * s, 4), areg, base + slot * AT_STAGE + kt * 2048 + s * 1024)

    def vread(slot, kt, u, rd, aregs=(4, 5), base=8192):
        return "ds_read_b64_tr_b16 %s, v%d offset:%d" % (R("v", V + 4 * u + 2 * rd, 2), aregs[rd], base + slot * AT_STAGE + kt * 2048 + u * 256)

    def qk(dst, s, c):
        return "v_mfma_f32_32x32x16_bf16 %s, %s, %s, %s" % (R("v", dst, 16), R("v", K + 4 * s, 4), R("v", Q + 4 * s, 4), c)

    def pv(u):
        return "v_mfma_f32_32x32x16_bf16 %s, %s, %s, %s" % (R("v", O, 16), R("v", V + 4 * u, 4), R("v", P + 4 * u, 4), R("v", O, 16))

    def ls(u):
        return "v_mfma_f32_16x16x32_bf16 %s, %s, %s, %s" % (R("v", L, 4), R("v", ONES, 4), R("v", P + 4 * u, 4), R("v", L, 4))

    def rowmax(sb, dst):
        a("v_max3_f32 v%d, v%d, v%d, v%d" % (dst, sb, sb + 1, sb + 2))
        for e in range(3, 15, 2):
            a("v_max3_f32 v%d, v%d, v%d, v%d" % (dst, dst, sb + e, sb + e + 1))
        a("v_max_f32 v%d, v%d, v%d" % (dst, dst, sb + 15))
        a("v_mov_b32 v%d, v%d" % (dst + 1, dst))
        a("s_nop 1")
        a("v_permlane32_swap_b32 v%d, v%d" % (dst, dst + 1))
        a("s_nop 1")
        a("v_max_f32 v%d, v%d, v%d" % (dst, dst, dst + 1))

    a("s_waitcnt vmcnt(4)")
    a("s_barrier")
    a(kread(0, 0, 0))
    a(kread(0, 0, 1))
    a("s_waitcnt lgkmcnt(0)")
    a(qk(SB[0], 0, "0"))
    a(qk(SB[0], 1, R("v", SB[0], 16)))
    a("s_nop 15")
    rowmax(SB[0], T)
    a("v_sub_f32 v%d, 0, v%d" % (T, T))
    for e in range(16):
        a("v_mov_b32 v%d, v%d" % (NEGM + e, T))
    a("s_nop 1")
    a(qk(SB[0], 0, R("v", NEGM, 16)))
    a(qk(SB[0], 1, R("v", SB[0], 16)))
    a(kread(0, 1, 0))
    a(kread(0, 1, 1))
    for u in range(2):
        for rd in range(2):
            a(vread(0, 0, u, rd))
    a("s_nop 7")
    a("s_mov_b32 s31, 4")
    a.label("L_at_loop")
    for slot in range(AT_NS):
        for kt in range(4):
            i = slot * 4 + kt
            sc, sn = SB[i & 1], SB[(i + 1) & 1]
            i2, i1 = (i + 2) % 16, (i + 1) % 16

            def ex(lo, hi):
                for e in range(lo, hi):
                    a("v_exp_f32 v%d, v%d" % (sc + e, sc + e))

            def cv(u):
                for e in range(4):
                    a("v_cvt_pk_bf16_f32 v%d, v%d, v%d" % (P + 4 * u + e, sc + 8 * u + 2 * e, sc + 8 * u + 2 * e + 1))
            a("s_waitcnt lgkmcnt(5)")
            a(qk(sn, 0, R("v", NEGM, 16)))
            ex(0, 4)
            a("s_waitcnt lgkmcnt(4)")
            a(qk(sn, 1, R("v", sn, 16)))
            if kt == 2:
                a("s_waitcnt vmcnt(2)")
                a("s_barrier")
            a(kread(i2 // 4, i2 % 4, 0))
            a(kread(i2 // 4, i2 % 4, 1))
            ex(4, 8)
            if kt == 2:
                for s in dma((slot + 3) % AT_NS):
                    a(s)
            ex(8, 10)
            cv(0)
            ex(10, 12)
            a("s_waitcnt lgkmcnt(4)")
            a(pv(0))
            a(vread(i1 // 4, i1 % 4, 0, 0))
            a(vread(i1 // 4, i1 % 4, 0, 1))
            ex(12, 16)
            a(ls(0))
            cv(1)
            a("s_waitcnt lgkmcnt(4)")
            a("s_nop 0")
            a(pv(1))
            a(ls(1))
            a(vread(i1 // 4, i1 % 4, 1, 0))
            a(vread(i1 // 4, i1 % 4, 1, 1))
    a("s_sub_u32 s31, s31, 1")
    a("s_cmp_lg_u32 s31, 0")
    a("s_cbranch_scc1 L_at_loop")
    a("s_nop 15")
    a("v_mov_b32 v%d, 0" % T)
    for e in range(16):
        a("v_fma_f32 v%d, v%d, 0, v%d" % (T, O + e, T))
    a("v_add_f32 v%d, v%d, v%d" % (T, T, L))
    a("v_mov_b32 v%d, 0x%x" % (T + 1, f32(2.0 ** 64)))
    a("v_cmp_nlt_f32 vcc, v%d, v%d" % (T, T + 1))
    a("s_nop 1")
    a("s_cmp_lg_u64 vcc, 0")
    a("s_cbranch_scc1 L_at_slow")
    a.label("L_at_fin")
    a("v_rcp_f32 v%d, v%d" % (T, L))
    a("s_mul_i32 s17, s13, %d" % ACT_MT)
    a("s_lshl_b32 s19, s12, 11")
    a("s_add_u32 s17, s17, s19")
    for e in range(16):
        a("v_mul_f32 v%d, v%d, v%d" % (O + e, O + e, T))
    for e in range(8):
        a("v_cvt_pk_bf16_f32 v%d, v%d, v%d" % (O + e, O + 2 * e, O + 2 * e + 1))
    a("buffer_store_dwordx4 %s, v1, s[24:27], s17 offen" % R("v", O, 4))
    a("buffer_store_dwordx4 %s, v1, s[24:27], s17 offen offset:1024" % R("v", O + 4, 4))
    a.label("L_at_end")
    a("s_endpgm")
    a.label("L_at_slow")
    M = NEGM
    a("""
    s_waitcnt vmcnt(0) lgkmcnt(0)
    s_lshl_b32 s32, s14, 12
    s_add_u32 s32, s32, %d           ; private lds base
    ; per-tile dma voffsets: K: (32+head)*131072 + lane*16 (+1024) ; V pieces with swizzle
    s_add_u32 s17, s12, 32
    s_lshl_b32 s17, s17, 17
    v_add_u32 v2, s17, v1
    s_add_u32 s17, s17, 0x400000
    v_lshrrev_b32 v112, 5, v0        ; l>>5
    v_and_b32 v113, 31, v0
    v_lshlrev_b32 v114, 2, v112      ; 4c for piece 0 (c = l>>5)
    v_xor_b32 v115, v113, v114
    v_lshlrev_b32 v115, 4, v115
    v_lshlrev_b32 v116, 9, v112
    v_add3_u32 v3, v115, v116, s17   ; piece 0
    v_xor_b32 v115, 8, v114          ; 4c for piece 1 (c = 2 + (l>>5))
    v_xor_b32 v115, v113, v115
    v_lshlrev_b32 v115, 4, v115
    v_add3_u32 v6, v115, v116, s17   ; piece 1 (offset:1024 added by the instruction)
    v_add_u32 v7, s32, v1            ; K read addr
    v_add_u32 v4, s32, v4
    v_add_u32 v5, s32, v5
    v_mov_b32 v%d, 0xff800000        ; m = -inf
    s_mov_b32 s30, 0
    """ % (AT_PRIV, M))
    for e in range(16):
        a("v_mov_b32 v%d, 0" % (O + e))
    for e in range(4):
        a("v_mov_b32 v%d, 0" % (L + e))
    a.label("L_at_sloop")
    a("""
    s_mov_b32 m0, s32
    s_nop 0
    buffer_load_dwordx4 v2, s[20:23], s30 offen lds
    buffer_load_dwordx4 v2, s[20:23], s30 offen offset:1024 lds
    s_add_u32 m0, s32, 2048
    s_nop 0
    buffer_load_dwordx4 v3, s[20:23], s30 offen lds
    buffer_load_dwordx4 v6, s[20:23], s30 offen offset:1024 lds
    s_waitcnt vmcnt(0)
    """)
    a(kread(0, 0, 0, areg=7))
    a(kread(0, 0, 1, areg=7))
    for u in range(2):
        for rd in range(2):
            a(vread(0, 0, u, rd, base=2048))
    a("s_waitcnt lgkmcnt(0)")
    sc = SB[0]
    a(qk(sc, 0, "0"))
    a(qk(sc, 1, R("v", sc, 16)))
    a("s_nop 15")
    rowmax(sc, T)
    a("v_max_f32 v%d, v%d, v%d" % (T, T, M))
    a("v_mov_b32 v%d, 0xff800000" % (T + 1))
    a("v_cmp_eq_f32 vcc, v%d, v%d" % (T, T + 1))
    a("s_nop 1")
    a("v_cndmask_b32 v%d, v%d, 0, vcc" % (T + 2, T))
    a("v_sub_f32 v%d, v%d, v%d" % (T + 3, M, T + 2))
    a("v_exp_f32 v%d, v%d" % (T + 3, T + 3))
    a("v_mov_b32 v%d, v%d" % (M, T))
    for e in range(16):
        a("v_sub_f32 v%d, v%d, v%d" % (sc + e, sc + e, T + 2))
    for e in range(16):
        a("v_exp_f32 v%d, v%d" % (sc + e, sc + e))
    for e in range(16):
        a("v_mul_f32 v%d, v%d, v%d" % (O + e, O + e, T + 3))
    for e in range(4):
        a("v_mul_f32 v%d, v%d, v%d" % (L + e, L + e, T + 3))
    for u in range(2):
        for e in range(4):
            a("v_cvt_pk_bf16_f32 v%d, v%d, v%d" % (P + 4 * u + e, sc + 8 * u + 2 * e, sc + 8 * u + 2 * e + 1))
    a("s_nop 1")
    a(pv(0))
    a(pv(1))
    a(ls(0))
    a(ls(1))
    a("s_nop 15")
    a("s_add_u32 s30, s30, 2048")
    a("s_cmp_lt_u32 s30, 0x20000")
    a("s_cbranch_scc1 L_at_sloop")
    a("s_branch L_at_fin")
    kernel_desc(a, name, 120, 120, 48)
    return "; @launch kernel=%s grid=(256,1,1) block=(512,1,1) lds=%d" % (name, AT_LDS)


G2_P = 4
G2_RING = 4 * G2_P * 4096
G2_LDS = G2_RING + 4 * 3 * 8192


def gen_gemm2(a):
    name = "gemm2_kernel"
    kernel_head(a, name)
    ACTR = 16
    WF = 144
    XR = 176
    TMP = 192
    a("""
    s_cmp_ge_u32 s2, 256
    s_cbranch_scc1 L_g2_end
    s_load_dwordx2 s[4:5], s[0:1], %d
    s_load_dwordx2 s[6:7], s[0:1], %d
    s_load_dwordx2 s[8:9], s[0:1], %d
    s_load_dwordx2 s[10:11], s[0:1], %d
    s_load_dwordx2 s[40:41], s[0:1], %d
    v_lshrrev_b32 v1, 6, v0
    s_and_b32 s3, s2, 7
    v_readfirstlane_b32 s14, v1      ; wave id
    s_lshr_b32 s17, s2, 3            ; i
    s_lshr_b32 s12, s3, 1
    s_lshl_b32 s12, s12, 2
    s_lshr_b32 s18, s17, 3
    s_add_u32 s12, s12, s18          ; mbk
    s_and_b32 s13, s3, 1
    s_lshl_b32 s13, s13, 3
    s_and_b32 s18, s17, 7
    s_add_u32 s13, s13, s18          ; nbk
    v_and_b32 v0, 63, v0
    v_lshlrev_b32 v1, 4, v0
    s_waitcnt lgkmcnt(0)
    """ % (KA_WO, KA_WD, KA_X, KA_WS, KA_OUT))
    srd(a, 20, 10, 11, ACT_BYTES, WS_ACT)
    srd(a, 24, 4, 5, D * D * 2)
    srd(a, 28, 8, 9, S * D * 2)
    srd(a, 32, 40, 41, S * D * 2)
    for i in range(4):
        a("s_add_u32 s17, s14, %d" % i)
        a("s_and_b32 s17, s17, 3")
        a("s_lshl_b32 s18, s12, 2")
        a("s_add_u32 s17, s17, s18")
        a("s_mul_i32 s17, s17, %d" % ACT_MT)
        a("v_add_u32 v%d, s17, v1" % (2 + i))
    a("""
    ; W dma voffset: (l>>3)*2048 + nbk*128 + ((l&7) ^ (((l>>4)&1)<<2))*16
    v_lshrrev_b32 v6, 3, v0
    v_lshlrev_b32 v6, 11, v6
    v_bfe_u32 v7, v0, 4, 1
    v_lshlrev_b32 v7, 2, v7
    v_and_b32 v8, 7, v0
    v_xor_b32 v7, v7, v8
    v_lshlrev_b32 v7, 4, v7
    s_lshl_b32 s17, s13, 7
    v_add3_u32 v6, v6, v7, s17
    v_add_u32 v7, %d, v6
    v_add_u32 v8, %d, v6
    v_add_u32 v9, %d, v6
    s_lshl_b32 s36, s14, 11          ; act soffset = u*2048, u = w
    s_lshl_b32 s37, s14, 16          ; W soffset = u*32*2048
    s_mul_i32 s38, s14, %d           ; wave lds ring base
    """ % (15360, 2 * 15360, 3 * 15360, G2_P * 4096))

    def wdma(slot):
        out = [["s_add_u32 m0, s38, %d" % (slot * 4096), "s_nop 0",
                "buffer_load_dwordx4 v6, s[24:27], s37 offen lds"]]
        for i in range(1, 4):
            out.append(["buffer_load_dwordx4 v%d, s[24:27], s37 offen offset:%d lds" % (6 + i, 1024 * i)])
        out[-1].append("s_add_u32 s37, s37, %d" % (4 * 65536))
        return out

    def areg(slot, mi, s):
        return ACTR + slot * 32 + mi * 8 + s * 4

    def aload(slot, mi, s):
        return "buffer_load_dwordx4 %s, v%d, s[20:23], s36 offen offset:%d" % (R("v", areg(slot, mi, s), 4), 2 + mi, 1024 * s)

    for u in range(G2_P):
        for g in wdma(u):
            for s_ in g:
                a(s_)
        for s in range(2):
            for mi in range(4):
                a(aload(u, mi, s))
        a("s_add_u32 s36, s36, 8192")
    a("""
    v_lshrrev_b32 v10, 5, v0
    v_bfe_u32 v11, v0, 2, 2          ; r
    v_lshl_add_u32 v10, v10, 2, v11  ; 4hh + r
    v_lshlrev_b32 v10, 7, v10
    v_bfe_u32 v11, v0, 3, 1          ; (r>>1)&1
    v_lshlrev_b32 v11, 6, v11
    v_bfe_u32 v12, v0, 4, 1
    v_lshlrev_b32 v12, 5, v12
    v_and_b32 v13, 3, v0
    v_lshlrev_b32 v13, 3, v13
    v_add3_u32 v10, v10, v12, v13
    v_add_u32 v10, s38, v10
    v_add_u32 v12, v10, v11          ; t=0 : + 64*((r>>1)&1)
    v_xor_b32 v11, 64, v11
    v_add_u32 v11, v10, v11          ; t=1
    v_mov_b32 v10, v12
    s_lshl_b32 s17, s12, 2
    s_add_u32 s17, s17, s14
    s_lshl_b32 s17, s17, 16
    s_lshl_b32 s18, s13, 7
    s_add_u32 s17, s17, s18
    v_and_b32 v12, 31, v0
    v_lshlrev_b32 v12, 11, v12
    v_lshrrev_b32 v13, 5, v0
    v_lshlrev_b32 v13, 4, v13
    v_add3_u32 v12, v12, v13, s17
    """)
    for k in range(128):
        a("v_accvgpr_write_b32 a%d, 0" % k)

    def wf(st, t, s):
        return WF + st * 16 + t * 8 + s * 4

    def wreads(slot, st):
        out = []
        for s in range(2):
            for t in range(2):
                for rd in range(2):
                    off = slot * 4096 + (16 * s + 8 * rd) * 128
                    out.append("ds_read_b64_tr_b16 %s, v%d offset:%d" % (R("v", wf(st, t, s) + 2 * rd, 2), 10 + t, off))
        return out

    def accr(mi, t):
        return (mi * 2 + t) * 16

    def unit(slot, prefetch, vm, last=False):
        st = slot & 1
        mf = []
        fl = {-1: ["s_waitcnt vmcnt(%d) lgkmcnt(0)" % vm]}
        g = 0
        for s in range(2):
            for mi in range(4):
                for t in range(2):
                    r = accr(mi, t)
                    mf.append("v_mfma_f32_32x32x16_bf16 %s, %s, %s, %s" % (
                        R("a", r, 16), R("v", wf(st, t, s), 4), R("v", areg(slot, mi, s), 4), R("a", r, 16)))
        if not last:
            for g, r in enumerate(wreads((slot + 1) % G2_P, st ^ 1)):
                fl.setdefault(g, []).append(r)
        if prefetch:
            wd = wdma(slot)
            fl.setdefault(0, []).extend(wd[0] + wd[1])
            fl.setdefault(1, []).extend(wd[2] + wd[3])
            for s in range(2):
                for mi in range(4):
                    gi = (s * 4 + mi) * 2 + 1
                    fl.setdefault(gi, []).append(aload(slot, mi, s))
            fl.setdefault(15, []).append("s_add_u32 s36, s36, 8192")
        interleave(a, mf, fl)

    a("s_waitcnt vmcnt(%d)" % (12 * G2_P - 4))
    for r in wreads(0, 0):
        a(r)
    a("s_mov_b32 s39, 0")
    a.label("L_g2_loop")
    for slot in range(G2_P):
        unit(slot, True, 12 * (G2_P - 1) - 4)
    a("""
    s_cmp_eq_u32 s39, 0
    s_cselect_b32 s24, s6, s24
    s_cselect_b32 s25, s7, s25
    s_cselect_b32 s26, 0x%x, s26
    s_lshl_b32 s17, s14, 16
    s_cmp_eq_u32 s39, 0
    s_cselect_b32 s37, s17, s37
    s_add_u32 s39, s39, 1
    s_cmp_lt_u32 s39, 8
    s_cbranch_scc1 L_g2_loop
    """ % (F * D * 2))
    for t in range(2):
        for pr in range(2):
            a("buffer_load_dwordx4 %s, v12, s[28:31], 0 offen offset:%d" % (R("v", XR + (t * 2 + pr) * 4, 4), t * 64 + pr * 32))
    for slot in range(G2_P):
        rem = G2_P - 1 - slot
        vm = max(12 * rem - 4, 0) + 4
        unit(slot, False, vm, last=(slot == G2_P - 1))
    a("""
    s_nop 7
    s_nop 7
    """)
    for i in range(1, 4):
        a("s_add_u32 s17, s14, %d" % i)
        a("s_and_b32 s17, s17, 3")
        a("s_mul_i32 s17, s17, 24576")
        a("s_add_u32 s17, s17, %d" % (G2_RING + (i - 1) * 8192))
        a("v_add_u32 v13, s17, v1")
        for q in range(8):
            a("ds_write_b128 v13, %s offset:%d" % (R("a", accr(i, 0) + 4 * q, 4), q * 1024))
    a("s_mul_i32 s17, s14, 24576")
    a("s_add_u32 s17, s17, %d" % G2_RING)
    a("v_add_u32 v14, s17, v1")
    for e in range(32):
        a("v_accvgpr_read_b32 v%d, a%d" % (TMP + e, e))
    a("s_waitcnt vmcnt(0)")
    for blk in range(4):
        x = XR + 4 * blk
        a("v_permlane32_swap_b32 v%d, v%d" % (x, x + 2))
        a("v_permlane32_swap_b32 v%d, v%d" % (x + 1, x + 3))
    a("s_nop 1")
    for d in range(16):
        a("v_lshlrev_b32 v%d, 16, v%d" % (TMP + 32, XR + d))
        a("v_and_b32 v%d, 0xffff0000, v%d" % (TMP + 33, XR + d))
        a("v_add_f32 v%d, v%d, v%d" % (TMP + 2 * d, TMP + 2 * d, TMP + 32))
        a("v_add_f32 v%d, v%d, v%d" % (TMP + 2 * d + 1, TMP + 2 * d + 1, TMP + 33))
    a("s_waitcnt lgkmcnt(0)")
    a("s_barrier")
    for i in range(3):
        for q in range(8):
            a("ds_read_b128 %s, v14 offset:%d" % (R("v", ACTR + i * 32 + 4 * q, 4), i * 8192 + q * 1024))
    for i in range(3):
        a("s_waitcnt lgkmcnt(%d)" % min(15, 8 * (2 - i)))
        if i == 0:
            a("s_waitcnt lgkmcnt(8)")
        for e in range(32):
            a("v_add_f32 v%d, v%d, v%d" % (TMP + e, TMP + e, ACTR + i * 32 + e))
    for d in range(16):
        a("v_cvt_pk_bf16_f32 v%d, v%d, v%d" % (XR + d, TMP + 2 * d, TMP + 2 * d + 1))
    a("s_nop 1")
    for blk in range(4):
        x = XR + 4 * blk
        a("v_permlane32_swap_b32 v%d, v%d" % (x, x + 2))
        a("v_permlane32_swap_b32 v%d, v%d" % (x + 1, x + 3))
    a("s_nop 1")
    for t in range(2):
        for pr in range(2):
            a("buffer_store_dwordx4 %s, v12, s[32:35], 0 offen offset:%d" % (R("v", XR + (t * 2 + pr) * 4, 4), t * 64 + pr * 32))
    a.label("L_g2_end")
    a("s_endpgm")
    kernel_desc(a, name, 256 + 128, 256, 48)
    return "; @launch kernel=%s grid=(256,1,1) block=(256,1,1) lds=%d" % (name, G2_LDS)


HEADER = """; Kernarg layout for this problem (80 bytes, ptrs only, base s[0:1]):
"""


def main():
    out = sys.argv[1] if len(sys.argv) > 1 else "cdna_kernels/%s.s" % NAME
    a = Asm()
    a.lines.append('.amdgcn_target "amdgcn-amd-amdhsa--gfx950"')
    launches = []
    gens = [gen_ln, gen_gemm1]
    if "gen_attn" in globals():
        gens.append(globals()["gen_attn"])
    if "gen_gemm2" in globals():
        gens.append(globals()["gen_gemm2"])
    for g in gens:
        launches.append(g(a))
    open(out, "w").write(HEADER + "\n".join(launches) + "\n" + a.text())


if __name__ == "__main__":
    main()
```

```python
import sys, struct, math

NAME = "parallel_sum__mha_block__glu_gated_glu__prompt"
S, D, H, DH, F = 2048, 1024, 32, 32, 3584
KA_X, KA_WQKV, KA_WO, KA_BX, KA_WG, KA_WU, KA_WD, KA_OUT, KA_DBG, KA_WS = [8 * i for i in range(10)]
WS_XN = 0
XN_BYTES = 64 * 128 * 512
WS_QKV = 4 << 20
QKV_BYTES = 96 * 64 * 2048
WS_ACT = 16 << 20
import os
ACT_MT = 576 * 512 + int(os.environ.get("ACT_PAD", "0"))
ACT_BYTES = 64 * ACT_MT


def f32(x):
    return struct.unpack("<I", struct.pack("<f", x))[0]


class Asm:
    def __init__(self):
        self.lines = []

    def __call__(self, s):
        for ln in s.split("\n"):
            ln = ln.strip()
            if ln:
                self.lines.append(("" if ln.endswith(":") else "    ") + ln)

    def label(self, l):
        self.lines.append(l + ":")

    def c(self, s):
        self.lines.append("    ; " + s)

    def text(self):
        return "\n".join(self.lines) + "\n"


def kernel_head(a, name):
    a.lines.append(".text")
    a.lines.append(".globl %s" % name)
    a.lines.append(".p2align 8")
    a.lines.append(".type %s,@function" % name)
    a.label(name)


def kernel_desc(a, name, vgpr, accum, sgpr=102):
    a.lines.append('.section .rodata,"a"')
    a.lines.append(".p2align 6")
    a.lines.append(".amdhsa_kernel %s" % name)
    a.lines.append("  .amdhsa_next_free_vgpr %d" % vgpr)
    a.lines.append("  .amdhsa_next_free_sgpr %d" % (102 if STAMP else sgpr))
    a.lines.append("  .amdhsa_accum_offset %d" % accum)
    a.lines.append("  .amdhsa_group_segment_fixed_size 0")
    a.lines.append("  .amdhsa_kernarg_size 80")
    a.lines.append("  .amdhsa_user_sgpr_count 2")
    a.lines.append("  .amdhsa_user_sgpr_kernarg_segment_ptr 1")
    a.lines.append("  .amdhsa_system_sgpr_workgroup_id_x 1")
    a.lines.append("  .amdhsa_float_denorm_mode_32 3")
    a.lines.append(".end_amdhsa_kernel")


def srd(a, d, lo, hi, nbytes, off=0):
    if off:
        a("s_add_u32 s%d, s%d, 0x%x" % (d, lo, off))
        a("s_addc_u32 s%d, s%d, 0" % (d + 1, hi))
    else:
        a("s_mov_b32 s%d, s%d" % (d, lo))
        a("s_mov_b32 s%d, s%d" % (d + 1, hi))
    a("s_mov_b32 s%d, 0x%x" % (d + 2, nbytes))
    a("s_mov_b32 s%d, 0x00020000" % (d + 3))


import os
STAMP = int(os.environ.get("STAMP", "0"))


STAMP_REGS = [(78, 79), (80, 81), (82, 83), (84, 85), (86, 87)]


def stamp(a, i):
    if STAMP:
        a("s_memtime s[98:99]")
        a("s_memrealtime s[100:101]")
        a("s_waitcnt lgkmcnt(0)")
        a("s_mov_b32 s%d, s98" % STAMP_REGS[i][0])
        a("s_mov_b32 s%d, s100" % STAMP_REGS[i][1])


STAMP_KIDX = {"ln": 0, "g1": 1, "at": 2, "g2": 3}


def stamp_out(a, tag, n, wave_sgpr):
    if not STAMP:
        return
    a("s_waitcnt vmcnt(0) lgkmcnt(0)")
    stamp(a, n - 1)
    a("s_load_dwordx2 s[4:5], s[0:1], %d" % KA_WS)
    a("s_waitcnt lgkmcnt(0)")
    srd(a, 8, 4, 5, 1 << 20, (64 << 20) + (STAMP_KIDX[tag[:2]] << 20))
    a("s_mov_b64 exec, 1")
    a("s_lshl_b32 s3, s2, 4")
    a("s_add_u32 s3, s3, s%d" % wave_sgpr)
    a("s_lshl_b32 s3, s3, 6")
    a("v_mov_b32 v0, s3")
    for i in range(n):
        a("v_mov_b32 v2, s%d" % STAMP_REGS[i][0])
        a("v_mov_b32 v3, s%d" % STAMP_REGS[i][1])
        a("buffer_store_dwordx2 v[2:3], v0, s[8:11], 0 offen offset:%d" % (8 * i))
        a("s_nop 1")


def R(kind, base, n=1):
    if n == 1:
        return "%s%d" % (kind, base)
    return "%s[%d:%d]" % (kind, base, base + n - 1)


def interleave(a, mfmas, fillers):
    for s in fillers.get(-1, []):
        a(s)
    for i, m in enumerate(mfmas):
        a(m)
        for s in fillers.get(i, []):
            a(s)


def ln_loads(a, xs, VB):
    V = VB
    a("""
    v_and_b32 v{V1}, 63, v0            ; lane
    v_lshrrev_b32 v{V2}, 6, v0         ; wave
    v_and_b32 v{V3}, 7, v{V1}          ; row in block
    v_lshrrev_b32 v{V4}, 3, v{V1}      ; kq
    v_lshl_add_u32 v{V5}, v{V2}, 4, v{V4}   ; pi (i=0) = wave*16 + kq ; i=1 -> +8
    v_add_u32 v{V6}, s3, v{V3}         ; global row
    v_lshlrev_b32 v{V7}, 11, v{V6}
    v_lshrrev_b32 v{V8}, 1, v{V5}      ; kappa
    v_and_b32 v{V9}, 1, v{V5}          ; p
    v_lshl_add_u32 v{V7}, v{V8}, 6, v{V7}
    v_lshl_add_u32 v{V7}, v{V9}, 4, v{V7}
    buffer_load_dwordx4 v[{L0}:{L0e}], v{V7}, s[{xs}:{xe}], 0 offen
    buffer_load_dwordx4 v[{L1}:{L1e}], v{V7}, s[{xs}:{xe}], 0 offen offset:32
    buffer_load_dwordx4 v[{L2}:{L2e}], v{V7}, s[{xs}:{xe}], 0 offen offset:256
    buffer_load_dwordx4 v[{L3}:{L3e}], v{V7}, s[{xs}:{xe}], 0 offen offset:288
    ; store offset: (mt*128 + 2*pi)*512 + (row&31)*16
    v_lshrrev_b32 v{V8}, 5, v{V6}
    v_lshlrev_b32 v{V8}, 6, v{V8}
    v_add_u32 v{V8}, v{V8}, v{V5}
    v_lshlrev_b32 v{V8}, 10, v{V8}
    v_and_b32 v{V9}, 31, v{V6}
    v_lshl_add_u32 v{V9}, v{V9}, 4, v{V8}   ; store offset
    v_lshlrev_b32 v{V11}, 4, v{V3}     ; lds read addr: row*16
    v_lshl_add_u32 v{V12}, v{V2}, 2, v{V11} ; lds write addr
    """.format(xs=xs, xe=xs + 3, L0=V + 16, L0e=V + 19, L1=V + 20, L1e=V + 23, L2=V + 24, L2e=V + 27, L3=V + 28, L3e=V + 31,
               **{"V%d" % i: V + i for i in range(16)}))


def ln_compute(a, os_, VB, lds, st_flags=""):
    V = VB
    X = V + 32
    T = V + 64
    for i in range(16):
        a("v_lshlrev_b32 v%d, 16, v%d" % (X + 2 * i, V + 16 + i))
        a("v_and_b32 v%d, 0xffff0000, v%d" % (X + 2 * i + 1, V + 16 + i))

    def reduce_rows(src, off):
        a("""
        s_nop 1
        v_add_f32_dpp v{s}, v{s}, v{s} row_ror:8 row_mask:0xf bank_mask:0xf
        v_mov_b32 v{t}, v{s}
        s_nop 1
        v_permlane16_swap_b32 v{s}, v{t}
        s_nop 1
        v_add_f32 v{s}, v{s}, v{t}
        v_mov_b32 v{t}, v{s}
        s_nop 1
        v_permlane32_swap_b32 v{s}, v{t}
        s_nop 1
        v_add_f32 v{s}, v{s}, v{t}
        ds_write_b32 v{w}, v{s} offset:{off}
        s_waitcnt lgkmcnt(0)
        s_barrier
        ds_read_b128 v[{q}:{q3}], v{r} offset:{off}
        s_waitcnt lgkmcnt(0)
        v_add_f32 v{q}, v{q}, v{q1}
        v_add_f32 v{q2}, v{q2}, v{q3}
        v_add_f32 v{s}, v{q}, v{q2}
        """.format(s=src, t=V + 14, w=V + 12, r=V + 11, off=off, q=T, q1=T + 1, q2=T + 2, q3=T + 3))
    M, Vr, Rc = V + 13, V + 15, V + 14
    a("v_add_f32 v%d, v%d, v%d" % (M, X, X + 1))
    a("v_add_f32 v%d, v%d, v%d" % (T, X + 2, X + 3))
    for i in range(4, 32, 2):
        a("v_add_f32 v%d, v%d, v%d" % (M, M, X + i))
        a("v_add_f32 v%d, v%d, v%d" % (T, T, X + i + 1))
    a("v_add_f32 v%d, v%d, v%d" % (M, M, T))
    reduce_rows(M, lds)
    a("v_mul_f32 v%d, 0x%x, v%d" % (M, f32(1.0 / D), M))
    a("v_mov_b32 v%d, 0" % Vr)
    a("v_mov_b32 v%d, 0" % (T + 4))
    for i in range(0, 32, 2):
        a("v_sub_f32 v%d, v%d, v%d" % (T, X + i, M))
        a("v_sub_f32 v%d, v%d, v%d" % (T + 1, X + i + 1, M))
        a("v_fmac_f32 v%d, v%d, v%d" % (Vr, T, T))
        a("v_fmac_f32 v%d, v%d, v%d" % (T + 4, T + 1, T + 1))
    a("v_add_f32 v%d, v%d, v%d" % (Vr, Vr, T + 4))
    reduce_rows(Vr, lds + 128)
    a("""
    v_mul_f32 v{v}, 0x{c:x}, v{v}        ; var
    v_cvt_pk_bf16_f32 v{m}, v{m}, v{v}   ; lo = mean bf16, hi = var bf16
    v_and_b32 v{v}, 0xffff0000, v{m}
    v_lshlrev_b32 v{m}, 16, v{m}         ; mean_bf
    v_add_f32 v{v}, 0x{e:x}, v{v}        ; + eps
    v_cvt_pk_bf16_f32 v{v}, v{v}, v{v}
    v_and_b32 v{v}, 0xffff0000, v{v}
    v_sqrt_f32 v{v}, v{v}
    s_nop 0
    v_cvt_pk_bf16_f32 v{v}, v{v}, v{v}
    v_and_b32 v{v}, 0xffff0000, v{v}     ; s (bf16)
    v_rcp_f32 v{r}, v{v}
    s_nop 0
    v_fma_f32 v{t}, -v{v}, v{r}, 1.0
    v_fma_f32 v{r}, v{r}, v{t}, v{r}
    """.format(v=Vr, m=M, r=Rc, t=T, c=f32(1.0 / D), e=f32(1e-5)))
    def dst(i):
        pc, d = i >> 2, i & 3
        pair, ab = pc >> 1, pc & 1
        return V + 16 + pair * 8 + (d >> 1) * 4 + ab * 2 + (d & 1)
    for i in range(16):
        x0, x1 = X + 2 * i, X + 2 * i + 1
        a("v_sub_f32 v%d, v%d, v%d" % (x0, x0, M))
        a("v_sub_f32 v%d, v%d, v%d" % (x1, x1, M))
        a("v_cvt_pk_bf16_f32 v%d, v%d, v%d" % (T, x0, x1))
        a("v_lshlrev_b32 v%d, 16, v%d" % (x0, T))
        a("v_and_b32 v%d, 0xffff0000, v%d" % (x1, T))
        for x in (x0, x1):
            a("v_mul_f32 v%d, v%d, v%d" % (T + 1, x, Rc))
            a("v_fma_f32 v%d, -v%d, v%d, v%d" % (T + 2, T + 1, Vr, x))
            a("v_fma_f32 v%d, v%d, v%d, v%d" % (x, T + 2, Rc, T + 1))
        a("v_cvt_pk_bf16_f32 v%d, v%d, v%d" % (dst(i), x0, x1))
    a("v_add_u32 v%d, 0x2000, v%d" % (V + 10, V + 9))
    for pair in range(2):
        for c in range(2):
            a("buffer_store_dwordx4 %s, v%d, s[%d:%d], 0 offen offset:%d%s" % (
                R("v", V + 16 + pair * 8 + c * 4, 4), V + 9 + pair, os_, os_ + 3, c * 512, st_flags))


def gen_ln(a):
    name = "ln_kernel"
    kernel_head(a, name)
    a("""
    s_cmp_ge_u32 s2, 256
    s_cbranch_scc1 L_ln_end
    s_load_dwordx2 s[4:5], s[0:1], %d
    s_load_dwordx2 s[6:7], s[0:1], %d
    s_lshl_b32 s3, s2, 3            ; first row
    s_waitcnt lgkmcnt(0)
    """ % (KA_X, KA_WS))
    stamp(a, 0)
    srd(a, 8, 4, 5, S * D * 2)
    srd(a, 12, 6, 7, XN_BYTES, WS_XN)
    ln_loads(a, 8, 0)
    a("s_waitcnt vmcnt(0)")
    stamp(a, 1)
    ln_compute(a, 12, 0, 0)
    if os.environ.get("LN_PF", "0") == "1":
        a("""
        s_load_dwordx2 s[16:17], s[0:1], %d
        s_load_dwordx2 s[18:19], s[0:1], %d
        s_load_dwordx2 s[20:21], s[0:1], %d
        s_lshl_b32 s3, s2, 12
        v_lshlrev_b32 v60, 4, v0
        v_add_u32 v60, s3, v60           ; wg*4096 + tid*16
        s_waitcnt lgkmcnt(0)
        """ % (KA_WQKV, KA_WG, KA_WU))
        for p, nb, n in ((16, 3 * D * D * 2, 6), (18, D * F * 2, 7), (20, D * F * 2, 7)):
            srd(a, 24, p, p + 1, nb)
            for i in range(n):
                a("s_mov_b32 s3, 0x%x" % (i << 20))
                a("buffer_load_dwordx4 v[64:67], v60, s[24:27], s3 offen")
    if STAMP:
        a("v_readfirstlane_b32 s14, v2")
    stamp(a, 2)
    stamp_out(a, "ln", 4, 14)
    a("""
    L_ln_end:
    s_endpgm
    """)
    kernel_desc(a, name, 72, 72, 32)
    return "; @launch kernel=%s grid=(256,1,1) block=(256,1,1) lds=256" % name


G1_ROT = int(os.environ.get("G1_ROT", "0"))
G1_PF = int(os.environ.get("G1_PF", "1"))
PFS = 80
G1_W = 16384
G1_COL = 10240
G1_STAGE = G1_W + 2 * G1_COL
G1_NST = 4
G1_LDS = G1_STAGE * G1_NST
G1_ST = os.environ.get("G1_ST", "")
if G1_ST:
    G1_ST = " " + G1_ST.replace("_", " ")
G1_SUB = {1: [("g", 0, 128), ("u", 4096, 128), ("q", 8192, 64)],
          2: [("g", 0, 64), ("u", 2048, 64), ("q", 4096, 192)]}
G1_TILES = {1: [(0, 0), (1, 0), (0, 1), (1, 1), (0, 2), (1, 2), (0, 3), (1, 3), (2, 0), (2, 1)],
            2: [(0, 0), (1, 0), (0, 1), (1, 1), (2, 0), (2, 1), (2, 2), (2, 3), (2, 4), (2, 5)]}


def gen_gemm1(a):
    name = "gemm1_kernel"
    kernel_head(a, name)
    global STAMP_REGS
    save_regs = STAMP_REGS
    STAMP_REGS = [(78, 79), (95, 96), (24, 25), (26, 27), (28, 29)]
    a("""
    s_cmp_ge_u32 s2, 256
    s_cbranch_scc1 L_g1_end
    s_load_dwordx2 s[4:5], s[0:1], %d
    s_load_dwordx2 s[6:7], s[0:1], %d
    s_load_dwordx2 s[8:9], s[0:1], %d
    s_load_dwordx2 s[10:11], s[0:1], %d
    v_lshrrev_b32 v1, 6, v0
    s_and_b32 s3, s2, 7
    v_readfirstlane_b32 s14, v1      ; wave id
    s_lshr_b32 s17, s2, 3
    s_and_b32 s12, s17, 3            ; jq
    s_lshr_b32 s13, s17, 2           ; mb
    s_lshr_b32 s15, s14, 1           ; wm
    s_and_b32 s16, s14, 1            ; wn
    v_and_b32 v0, 63, v0             ; lane
    ; wave column c = 2*jq + wn (0..7): c = 3, 7 are variant 2 (b = 2x + (c>>2)); others variant 1 with ai = c - (c>>2) (0..5)
    s_lshl_b32 s17, s12, 1
    s_add_u32 s17, s17, s16          ; c
    s_lshr_b32 s18, s17, 2           ; c>>2
    s_and_b32 s19, s17, 3
    s_cmp_eq_u32 s19, 3
    s_cbranch_scc1 L_g1_isv2
    s_sub_u32 s17, s17, s18          ; ai
    s_mul_i32 s19, s3, 6
    s_add_u32 s19, s19, s17          ; a
    s_lshl_b32 s62, s19, 6           ; f0 = 64 a
    ; qkv tile: ai 0 -> Q(4x+3), 1 -> K(4x+3), 2..5 -> V(4x + ai-2)
    s_lshl_b32 s19, s3, 2
    s_lshl_b32 s18, s17, 5
    s_add_u32 s18, s18, 3            ; 32*ai + 3
    s_add_u32 s63, s17, 62           ; 64 + ai - 2
    s_cmp_lt_u32 s17, 2
    s_cselect_b32 s63, s18, s63
    s_add_u32 s63, s63, s19
    s_mov_b32 s77, 1
    s_branch L_g1_vd
    L_g1_isv2:
    s_lshl_b32 s19, s3, 1
    s_add_u32 s19, s19, s18          ; b
    s_lshl_b32 s62, s19, 5
    s_add_u32 s62, s62, 3072         ; f0 = 3072 + 32 b
    s_lshl_b32 s63, s18, 5           ; Q (0) or K (32)
    s_lshl_b32 s19, s3, 2
    s_add_u32 s63, s63, s19
    s_mov_b32 s77, 2
    L_g1_vd:
    s_waitcnt lgkmcnt(0)
    """ % (KA_WQKV, KA_WG, KA_WU, KA_WS))
    stamp(a, 0)
    srd(a, 20, 10, 11, XN_BYTES, WS_XN)
    srd(a, 64, 10, 11, QKV_BYTES, WS_QKV)
    srd(a, 68, 10, 11, ACT_BYTES, WS_ACT)
    a("""
    s_lshl_b32 s17, s13, 3
    s_lshl_b32 s18, s14, 1
    s_add_u32 s17, s17, s18          ; global m-tile
    s_lshl_b32 s17, s17, 16
    v_lshlrev_b32 v23, 4, v0         ; lane*16
    v_add_u32 v1, s17, v23
    v_add_u32 v2, 0x10000, v1
    s_mov_b32 s59, 0
    s_lshl_b32 s60, s14, 12          ; lds off = wave*4096
    s_mul_i32 s18, s16, %d
    s_add_u32 s18, s18, %d           ; column region base
    s_lshl_b32 s72, s62, 1           ; gate/up column byte offset
    s_lshl_b32 s73, s63, 6           ; qkv column byte offset
    """ % (G1_COL, G1_W))
    a("s_lshl_b32 s17, s77, 1")
    a("s_add_u32 s17, s17, s15")
    for sel in (3, 4, 5):
        a("s_cmp_eq_u32 s17, %d" % sel)
        a("s_cbranch_scc1 L_g1_set%d" % sel)
    for sel in (2, 3, 4, 5):
        var, wm = sel >> 1, sel & 1
        if sel != 2:
            a.label("L_g1_set%d" % sel)
        instrs = []
        for (mat, off, rs) in G1_SUB[var]:
            for idx in range(rs * 32 // 1024):
                instrs.append((mat, off, rs, idx))
        assert len(instrs) == 10
        for i, (mat, off, rs, idx) in enumerate(instrs[5 * wm: 5 * wm + 5]):
            sd = 24 + 4 * i
            p = {"q": 4, "g": 6, "u": 8}[mat]
            rowb = 3 * D * 2 if mat == "q" else F * 2
            a("s_mov_b32 s%d, s%d" % (sd, p))
            a("s_mov_b32 s%d, s%d" % (sd + 1, p + 1))
            a("s_mov_b32 s%d, 0x%x" % (sd + 2, D * rowb))
            a("s_mov_b32 s%d, %d" % (49 + i, 32 * rowb))
            a("s_add_u32 s%d, s18, %d" % (54 + i, off + idx * 1024))
            cpr = rs // 16
            a("v_add_u32 v8, %d, v0" % (idx * 64))
            if cpr == 12:
                a("v_mul_u32_u24 v9, 5462, v8")
                a("v_lshrrev_b32 v9, 16, v9")
                a("v_mul_u32_u24 v10, 12, v9")
                a("v_sub_u32 v10, v8, v10")
            else:
                sh = {8: 3, 4: 2}[cpr]
                a("v_lshrrev_b32 v9, %d, v8" % sh)
                a("v_and_b32 v10, %d, v8" % (cpr - 1))
            if rs == 128:
                a("v_bfe_u32 v11, v9, 1, 2")
            else:
                a("v_bfe_u32 v11, v9, 2, 1")
            a("v_lshlrev_b32 v11, 1, v11")
            a("v_xor_b32 v10, v10, v11")
            a("v_mul_u32_u24 v9, %d, v9" % rowb)
            a("v_lshlrev_b32 v10, 4, v10")
            a("v_add3_u32 v%d, v9, v10, s%d" % (3 + i, 73 if mat == "q" else 72))
        if sel != 5:
            a("s_branch L_g1_setd")
    a.label("L_g1_setd")
    for i in range(5):
        a("s_mov_b32 s%d, 0x00020000" % (24 + 4 * i + 3))
        a("s_mov_b32 s%d, 0" % (44 + i))
    if G1_ROT:
        a("s_lshl_b32 s17, s3, 2")
        a("s_lshl_b32 s59, s17, 11")
        for i in range(5):
            a("s_mul_i32 s%d, s17, s%d" % (44 + i, 49 + i))

    if G1_PF:
        srd(a, PFS, 6, 7, D * F * 2)
        srd(a, PFS + 4, 8, 9, D * F * 2)
        srd(a, PFS + 8, 4, 5, D * 3 * D * 2)
        a("s_mov_b32 s%d, %d" % (PFS + 12, 128 * F * 2))
        a("s_mov_b32 s%d, %d" % (PFS + 13, 128 * F * 2))
        a("s_mov_b32 s%d, %d" % (PFS + 14, 128 * 3 * D * 2))
        a("s_lshl_b32 s17, s2, 2")
        a("s_add_u32 s17, s17, s14")
        a("s_lshl_b32 s17, s17, 10")
        a("v_add_u32 v23, s17, v23")

    def pf(n):
        m = [0, 1, 2, 0, 1, 2, 0, 1][n % 8]
        return "buffer_load_dwordx4 a[232:235], v23, s[%d:%d], s%d offen\ns_add_u32 s%d, s%d, 0x100000" % (
            PFS + 4 * m, PFS + 4 * m + 3, PFS + 12 + m, PFS + 12 + m, PFS + 12 + m)

    def dma_list(slot):
        return dma_list0(slot) + ([pf(2 * slot), pf(2 * slot + 1)] if G1_PF else [])

    def dma_list0(slot):
        base = slot * G1_STAGE
        out = ["s_add_u32 m0, s60, %d" % base,
               "buffer_load_dwordx4 v1, s[20:23], s59 offen lds",
               "buffer_load_dwordx4 v1, s[20:23], s59 offen offset:1024 lds",
               "s_add_u32 m0, s60, %d" % (base + 2048),
               "buffer_load_dwordx4 v2, s[20:23], s59 offen lds",
               "buffer_load_dwordx4 v2, s[20:23], s59 offen offset:1024 lds\ns_add_u32 s59, s59, 2048"]
        for i in range(5):
            sd = 24 + 4 * i
            out.append("s_add_u32 m0, s%d, %d" % (54 + i, base))
            out.append("buffer_load_dwordx4 v%d, s[%d:%d], s%d offen lds\ns_add_u32 s%d, s%d, s%d" % (
                3 + i, sd, sd + 3, 44 + i, 44 + i, 44 + i, 49 + i))
        return out

    for st in range(G1_NST):
        for s in dma_list(st):
            a(s)
            if "m0" in s:
                a("s_nop 0")
    WIN = 2 * G1_STAGE
    a("""
    v_lshrrev_b32 v10, 4, v0         ; g
    v_and_b32 v11, 15, v0            ; m
    v_lshlrev_b32 v22, 9, v10
    v_lshl_add_u32 v22, v11, 4, v22
    s_lshl_b32 s17, s15, 13
    v_add_u32 v8, s17, v22
    v_add_u32 v9, %d, v8
    """ % WIN)

    NV = 58

    def acc(tn, tm):
        k = tn * 8 + tm
        k2 = 79 - k
        if k2 < NV:
            return ("v", 24 + 4 * k2)
        return ("a", 4 * (k2 - NV))
    for k in range(232):
        a("v_mov_b32 v%d, 0" % (24 + k))
    for k in range(88):
        a("v_accvgpr_write_b32 a%d, 0" % k)

    def wfrag(st, tn):
        return 88 + 72 * st + 4 * tn

    def xfrag(st, tm):
        return 88 + 72 * st + 40 + 4 * tm

    def addr_setup(var):
        amap = {}
        a("""
        v_lshrrev_b32 v24, 4, v0         ; g
        v_bfe_u32 v25, v0, 2, 2          ; r
        v_lshl_add_u32 v26, v24, 2, v25  ; rho0 = 4g + r
        v_and_b32 v27, 3, v0
        v_lshlrev_b32 v27, 3, v27
        v_add_u32 v27, s18, v27
        """)
        reg = 10
        done = {}
        for si, (mat, off, rs) in enumerate(G1_SUB[var]):
            nun = rs // 32
            nreg = 4 if rs == 128 else 2
            if rs not in done:
                done[rs] = reg
                if rs == 128:
                    a("v_bfe_u32 v28, v26, 1, 2")
                else:
                    a("v_and_b32 v28, 1, v24")
                a("v_mul_u32_u24 v29, %d, v26" % rs)
                a("v_add_u32 v29, v29, v27")
                for u in range(nreg):
                    a("v_xor_b32 v30, %d, v28" % u)
                    a("v_lshl_add_u32 v%d, v30, 5, v29" % (reg + 2 * u))
                    a("v_add_u32 v%d, %d, v%d" % (reg + 2 * u + 1, WIN, reg + 2 * u))
                reg += 2 * nreg
            for u in range(nun):
                amap[(si, u)] = (done[rs] + 2 * (u % nreg), off + (u // nreg) * 64, rs)
        assert reg <= 22
        for k in range(24, 31):
            a("v_mov_b32 v%d, 0" % k)
        return amap

    def reads(var, amap, slot, st):
        win = slot // 2
        base = (slot % 2) * G1_STAGE
        xs = ["ds_read_b128 %s, v%d offset:%d" % (R("a", xfrag(st, tm), 4), 8 + win, base + (tm >> 1) * 2048 + (tm & 1) * 256)
              for tm in range(8)]
        ws = []
        for tn, key in enumerate(G1_TILES[var]):
            reg, imm, rs = amap[key]
            for rd in range(2):
                off = base + imm + 16 * rd * rs
                assert off < 65536
                ws.append("ds_read_b64_tr_b16 %s, v%d offset:%d" % (R("a", wfrag(st, tn) + 2 * rd, 2), reg + win, off))
        return ws[:2] + xs + ws[2:]

    def mfmas(st):
        out = []
        for tn in range(10):
            for tm in range(8):
                k, r = acc(tn, tm)
                out.append("v_mfma_f32_16x16x32_bf16 %s, %s, %s, %s" % (
                    R(k, r, 4), R("a", wfrag(st, tn), 4), R("a", xfrag(st, tm), 4), R(k, r, 4)))
        return out

    def stage(var, amap, slot, dma, vm, last=False):
        st = slot & 1
        fl = {-1: ["s_waitcnt lgkmcnt(0)"]}
        if not last:
            fl[1] = ["s_waitcnt vmcnt(%d)" % vm, "s_barrier"]
            rd = reads(var, amap, (slot + 1) % G1_NST, st ^ 1)
            for g, r in enumerate(rd):
                fl.setdefault(2 + 2 * g, []).append(r)
        if dma:
            for g, d in enumerate(dma_list(slot)):
                fl.setdefault(5 + 4 * g, []).append(d)
        interleave(a, mfmas(st), fl)

    a("s_cmp_eq_u32 s77, 2")
    a("s_cbranch_scc1 L_g1_w2")
    for var in (1, 2):
        if var == 2:
            a.label("L_g1_w2")
        amap = addr_setup(var)
        GN = 11 if G1_PF else 9
        PN = 2 if G1_PF else 0
        a("s_waitcnt vmcnt(%d)" % (3 * GN + PN))
        a("s_barrier")
        stamp(a, 1)
        for r in reads(var, amap, 0, 0):
            a(r)
        a("s_mov_b32 s61, 7")
        a.label("L_g1_loop%d" % var)
        if G1_ROT:
            a("s_cmp_eq_u32 s59, 0x10000")
            a("s_cselect_b32 s59, 0, s59")
            for i in range(5):
                a("s_cselect_b32 s%d, 0, s%d" % (44 + i, 44 + i))
        for slot in range(4):
            stage(var, amap, slot, True, 2 * GN + PN)
        a("s_sub_u32 s61, s61, 1")
        a("s_cmp_lg_u32 s61, 0")
        a("s_cbranch_scc1 L_g1_loop%d" % var)
        stage(var, amap, 0, False, 2 * GN + PN)
        stage(var, amap, 1, False, GN + PN)
        stage(var, amap, 2, False, PN)
        stage(var, amap, 3, False, 0, last=True)
        stamp(a, 2)
        a("s_nop 7")
        a("s_mov_b32 s72, 0x%x" % f32(-math.log2(math.e)))
        a("s_mov_b32 s73, 0x%x" % f32(DH ** -0.5 * math.log2(math.e)))
        a("s_lshl_b32 s74, s13, 3")
        a("s_lshl_b32 s17, s15, 2")
        a("s_add_u32 s74, s74, s17")
        tiles = G1_TILES[var]
        nq = 1 if var == 1 else 3
        ng = 10 - 2 * nq
        a("s_cmp_ge_u32 s63, 32")
        a("s_cbranch_scc1 L_g1_ns%d" % var)
        for tn in range(ng, 10):
            for tm in range(8):
                k, r = acc(tn, tm)
                assert k == "v"
                for e in range(4):
                    a("v_mul_f32 v%d, s73, v%d" % (r + e, r + e))
        a.label("L_g1_ns%d" % var)
        for q in range(nq):
            a("s_add_u32 s75, s63, %d" % q)
            a("s_lshl_b32 s76, s75, 6")
            a("s_add_u32 s76, s76, s74")
            a("s_lshl_b32 s76, s76, 11")
            for tm in range(8):
                _, r0 = acc(ng + 2 * q, tm)
                _, r1 = acc(ng + 2 * q + 1, tm)
                a("v_cvt_pk_bf16_f32 v%d, v%d, v%d" % (r0, r0, r0 + 1))
                a("v_cvt_pk_bf16_f32 v%d, v%d, v%d" % (r0 + 1, r0 + 2, r0 + 3))
                a("v_cvt_pk_bf16_f32 v%d, v%d, v%d" % (r0 + 2, r1, r1 + 1))
                a("v_cvt_pk_bf16_f32 v%d, v%d, v%d" % (r0 + 3, r1 + 2, r1 + 3))
                off = (tm & 1) * 256 + ((tm >> 1) & 1) * 2048
                if tm == 4:
                    a("s_add_u32 s76, s76, 4096")
                a("buffer_store_dwordx4 %s, v22, s[64:67], s76 offen offset:%d%s" % (R("v", r0, 4), off, G1_ST))
        free = [acc(9, tm)[1] for tm in range(8)]
        for fg in reversed(range(ng // 4)):
            a("s_lshr_b32 s75, s62, 5")
            a("s_add_u32 s75, s75, %d" % (32 + fg))
            a("s_lshl_b32 s75, s75, 11")
            a("s_mul_i32 s76, s74, %d" % ACT_MT)
            a("s_add_u32 s76, s76, s75")
            for tm in range(8):
                regs = []
                fi = 0
                for j in range(4):
                    k, r = acc(4 * fg + j, tm)
                    if k == "a":
                        r2 = free[(4 * (tm & 1) + fi) % 8]
                        fi += 1
                        for e in range(4):
                            a("v_accvgpr_read_b32 v%d, a%d" % (r2 + e, r + e))
                        r = r2
                    regs.append(r)
                g0, u0, g1, u1 = regs
                gs = [g0 + e for e in range(4)] + [g1 + e for e in range(4)]
                us = [u0 + e for e in range(4)] + [u1 + e for e in range(4)]
                for x in gs:
                    a("v_mul_f32 v%d, s72, v%d" % (x, x))
                for x in gs:
                    a("v_exp_f32 v%d, v%d" % (x, x))
                for x in gs:
                    a("v_add_f32 v%d, 1.0, v%d" % (x, x))
                for x in gs:
                    a("v_rcp_f32 v%d, v%d" % (x, x))
                for x, y in zip(gs, us):
                    a("v_mul_f32 v%d, v%d, v%d" % (x, x, y))
                for e in range(4):
                    a("v_cvt_pk_bf16_f32 v%d, v%d, v%d" % (u0 + e, gs[2 * e], gs[2 * e + 1]))
                if tm and tm % 2 == 0:
                    a("s_add_u32 s76, s76, %d" % ACT_MT)
                a("buffer_store_dwordx4 %s, v22, s[68:71], s76 offen offset:%d%s" % (R("v", u0, 4), (tm & 1) * 256, G1_ST))
        stamp(a, 3)
        stamp_out(a, "g1_%d" % var, 5, 14)
        a("s_endpgm")
    a.label("L_g1_end")
    a("s_endpgm")
    STAMP_REGS = save_regs
    kernel_desc(a, name, 256 + 236, 256, 96)
    return "; @launch kernel=%s grid=(256,1,1) block=(256,1,1) lds=%d" % (name, G1_LDS)


AT_STAGE = 16384
AT_NS = 3
AT_PRIV = AT_STAGE * AT_NS
AT_LDS = AT_PRIV + 4 * 4096


def gen_attn(a):
    name = "attn_kernel"
    kernel_head(a, name)
    Q = [16, 24]
    NEGM = 32
    SB = [48, 64]
    O = [80, 96]
    P = 112
    KF = [120, 128]
    VF = [136, 144]
    L = [152, 156]
    ONES = 160
    T = 164
    PFD = 176
    a("""
    s_cmp_ge_u32 s2, 256
    s_cbranch_scc1 L_at_end
    s_load_dwordx2 s[10:11], s[0:1], %d
    s_load_dwordx2 s[4:5], s[0:1], %d
    s_load_dwordx2 s[6:7], s[0:1], %d
    v_lshlrev_b32 v7, 4, v0          ; tid*16
    v_lshrrev_b32 v1, 6, v0
    s_and_b32 s3, s2, 7
    v_readfirstlane_b32 s14, v1      ; wave id
    s_lshr_b32 s17, s2, 3
    s_and_b32 s12, s17, 3
    s_lshl_b32 s3, s3, 2
    s_add_u32 s12, s12, s3           ; head
    s_lshr_b32 s13, s17, 2           ; qb
    s_lshl_b32 s13, s13, 3
    s_lshl_b32 s15, s14, 1
    s_add_u32 s13, s13, s15          ; first q m-tile of this wave
    v_and_b32 v0, 63, v0             ; lane
    v_lshlrev_b32 v1, 4, v0          ; lane*16
    s_lshl_b32 s17, s2, 12
    v_add_u32 v7, s17, v7            ; prefetch voffset = wg*4096 + tid*16
    s_mov_b32 s44, 0
    s_mov_b32 s45, 0
    s_waitcnt lgkmcnt(0)
    """ % (KA_WS, KA_WO, KA_WD))
    stamp(a, 0)
    srd(a, 20, 10, 11, QKV_BYTES, WS_QKV)
    a("""
    s_add_u32 s17, s12, 32
    s_lshl_b32 s17, s17, 17
    s_lshl_b32 s18, s14, 11
    s_add_u32 s17, s17, s18
    v_add_u32 v2, s17, v1
    s_add_u32 s17, s17, 0x400000
    v_lshrrev_b32 v8, 5, v0
    v_and_b32 v9, 31, v0
    v_lshlrev_b32 v10, 2, v8
    v_xor_b32 v11, v9, v10
    v_lshlrev_b32 v11, 4, v11
    v_lshlrev_b32 v12, 9, v8
    v_add3_u32 v3, v11, v12, s17
    v_xor_b32 v11, 0x80, v11
    v_add3_u32 v6, v11, v12, s17
    s_mov_b32 s30, 0
    """)

    def dma(slot, pf=True):
        out = ["s_add_u32 m0, s18, %d" % (slot * AT_STAGE),
               "buffer_load_dwordx4 v2, s[20:23], s30 offen lds",
               "buffer_load_dwordx4 v2, s[20:23], s30 offen offset:1024 lds",
               "s_add_u32 m0, s18, %d" % (slot * AT_STAGE + 8192),
               "buffer_load_dwordx4 v3, s[20:23], s30 offen lds",
               "buffer_load_dwordx4 v6, s[20:23], s30 offen offset:1024 lds\ns_add_u32 s30, s30, 8192\ns_and_b32 s30, s30, 0x1ffff"]
        if slot == 0:
            out.append("buffer_load_dwordx4 %s, v7, s[36:39], s44 offen\ns_add_u32 s44, s44, 0x100000" % R("v", PFD, 4))
        else:
            out.append("buffer_load_dwordx4 %s, v7, s[40:43], s45 offen\ns_add_u32 s45, s45, 0x100000" % R("v", PFD, 4))
        return out
    srd(a, 36, 4, 5, 0)
    srd(a, 40, 6, 7, 0)
    for s in dma(0):
        a(s)
        if "m0" in s:
            a("s_nop 0")
    a("""
    s_lshl_b32 s17, s12, 6
    s_add_u32 s17, s17, s13
    s_lshl_b32 s17, s17, 11
    """)
    for q in range(2):
        for s in range(2):
            a("buffer_load_dwordx4 %s, v1, s[20:23], s17 offen offset:%d" % (R("v", Q[q] + 4 * s, 4), q * 2048 + s * 1024))
    for st in range(1, AT_NS):
        for s in dma(st):
            a(s)
            if "m0" in s:
                a("s_nop 0")
    a("s_mov_b32 s38, 0x%x" % (D * D * 2))
    a("s_mov_b32 s42, 0x%x" % (F * D * 2))
    a("s_mov_b32 s44, 0")
    a("s_mov_b32 s45, 0")
    srd(a, 24, 10, 11, ACT_BYTES, WS_ACT)
    srd(a, 48, 10, 11, FLAG_BYTES, WS_FLAG)
    a("""
    v_bfe_u32 v8, v0, 4, 1           ; s (d half)
    v_and_b32 v9, 3, v0              ; c
    v_lshrrev_b32 v10, 5, v0         ; hh'
    v_bfe_u32 v11, v0, 2, 2          ; r
    v_lshl_add_u32 v11, v10, 2, v11
    v_lshlrev_b32 v12, 2, v9
    v_xor_b32 v13, v11, v12
    v_xor_b32 v14, 8, v13
    v_lshlrev_b32 v8, 3, v8
    v_lshl_add_u32 v8, v9, 9, v8
    v_lshl_add_u32 v4, v13, 4, v8
    v_lshl_add_u32 v5, v14, 4, v8
    v_bfe_u32 v8, v0, 2, 1
    v_bfe_u32 v9, v0, 4, 1
    v_cmp_eq_u32 vcc, v8, v9
    v_mov_b32 v8, 0x3f803f80
    s_nop 1
    """)
    for e in range(4):
        a("v_cndmask_b32 v%d, 0, v8, vcc" % (ONES + e))
    for q in range(2):
        for e in range(16):
            a("v_mov_b32 v%d, 0" % (O[q] + e))
        for e in range(4):
            a("v_mov_b32 v%d, 0" % (L[q] + e))
    for e in range(4):
        a("v_mov_b32 v%d, 0" % (P + 4 + e))
    for e in range(4):
        a("v_mov_b32 v%d, 0" % (VF[1] + 4 + e))

    def kread(kf, off, s, areg=1):
        return "ds_read_b128 %s, v%d offset:%d" % (R("v", kf + 4 * s, 4), areg, off + s * 1024)

    def vread(vf, off, u, rd):
        return "ds_read_b64_tr_b16 %s, v%d offset:%d" % (R("v", vf + 4 * u + 2 * rd, 2), 4 + rd, off + u * 256)

    def koff(i):
        i %= 4 * AT_NS
        return (i // 4) * AT_STAGE + (i % 4) * 2048

    def qk(dst, kf, q, s, c):
        return "v_mfma_f32_32x32x16_bf16 %s, %s, %s, %s" % (R("v", dst, 16), R("v", kf + 4 * s, 4), R("v", Q[q] + 4 * s, 4), c)

    def pv(q, vf, u):
        return "v_mfma_f32_32x32x16_bf16 %s, %s, %s, %s" % (R("v", O[q], 16), R("v", vf + 4 * u, 4), R("v", P + 4 * u, 4), R("v", O[q], 16))

    def ls(q, u):
        return "v_mfma_f32_16x16x32_bf16 %s, %s, %s, %s" % (R("v", L[q], 4), R("v", ONES, 4), R("v", P + 4 * u, 4), R("v", L[q], 4))

    def rowmax(sb, dst, first=True):
        if first:
            a("v_max3_f32 v%d, v%d, v%d, v%d" % (dst, sb, sb + 1, sb + 2))
            rest = list(range(3, 16))
        else:
            rest = list(range(16))
        while len(rest) >= 2:
            a("v_max3_f32 v%d, v%d, v%d, v%d" % (dst, dst, sb + rest[0], sb + rest[1]))
            rest = rest[2:]
        if rest:
            a("v_max_f32 v%d, v%d, v%d" % (dst, dst, sb + rest[0]))

    def crossmax(dst):
        a("v_mov_b32 v%d, v%d" % (dst + 1, dst))
        a("s_nop 1")
        a("v_permlane32_swap_b32 v%d, v%d" % (dst, dst + 1))
        a("s_nop 1")
        a("v_max_f32 v%d, v%d, v%d" % (dst, dst, dst + 1))

    a("""
    s_lshl_b32 s17, s2, 7
    v_mov_b32 v8, 0
    s_mov_b64 exec, 1
    buffer_store_dword v8, v8, s[48:51], s17 offen
    s_mov_b64 exec, -1
    """)
    GN = 5
    a("s_waitcnt vmcnt(%d)" % ((AT_NS - 1) * GN + 1))
    a("s_barrier")
    stamp(a, 1)
    a(kread(KF[0], 0, 0))
    a(kread(KF[0], 0, 1))
    for u in range(2):
        for rd in range(2):
            a(vread(VF[0], 8192, u, rd))
    a("s_waitcnt lgkmcnt(4)")
    for q in range(2):
        a(qk(SB[q], KF[0], q, 0, "0"))
        a(qk(SB[q], KF[0], q, 1, R("v", SB[q], 16)))
    a("s_nop 15")
    rowmax(SB[0], T)
    rowmax(SB[1], T, first=False)
    crossmax(T)
    a("v_sub_f32 v%d, 0, v%d" % (T, T))
    for e in range(16):
        a("v_mov_b32 v%d, v%d" % (NEGM + e, T))
    a("s_nop 1")
    a(qk(SB[0], KF[0], 0, 0, R("v", NEGM, 16)))
    a(qk(SB[0], KF[0], 0, 1, R("v", SB[0], 16)))
    a("s_nop 7")
    a("s_nop 3")

    a_real = a

    def afilt(s):
        if os.environ.get("AT_NOBAR") and (s.startswith("s_barrier") or "vmcnt" in s or s.startswith("buffer_load") or "m0" in s):
            return
        if os.environ.get("AT_NOLDS") and (s.startswith("ds_read") or "lgkmcnt" in s):
            return
        if os.environ.get("AT_NOLS") and s.startswith("v_mfma_f32_16x16"):
            return
        if os.environ.get("AT_NOCVT") and s.startswith("v_cvt"):
            return
        if os.environ.get("AT_NOM32") and s.startswith("v_mfma_f32_32x32"):
            return
        a_real(s)

    def slot(t, ring_i, vm=None, dma_slot=None):
        a = afilt
        q = t & 1
        i = ring_i
        sc, sn = SB[q], SB[q ^ 1]
        kn = KF[(i + q) & 1]
        vprev = VF[(i - 1 + q) & 1]
        vcur = VF[i & 1]
        nk, nv = KF[(i + 1) & 1], VF[(i + 1) & 1]
        o1 = koff(i + 1)
        if q == 0:
            rds = [kread(nk, o1, 0), kread(nk, o1, 1), vread(nv, o1 + 8192, 0, 0)]
        else:
            rds = [vread(nv, o1 + 8192, 0, 1), vread(nv, o1 + 8192, 1, 0), vread(nv, o1 + 8192, 1, 1)]
        dm = dma(dma_slot) if dma_slot is not None else []

        def ex(lo, hi):
            for e in range(lo, hi):
                a("v_exp_f32 v%d, v%d" % (sc + e, sc + e))

        def cv(u):
            for e in range(4):
                a("v_cvt_pk_bf16_f32 v%d, v%d, v%d" % (P + 4 * u + e, sc + 8 * u + 2 * e, sc + 8 * u + 2 * e + 1))

        def dd(k):
            if k < len(dm):
                a(dm[k])
        a("s_waitcnt lgkmcnt(%d)" % (0 if q == 0 else 1))
        a(qk(sn, kn, q ^ 1, 0, R("v", NEGM, 16)))
        if vm is not None:
            a("s_waitcnt vmcnt(%d)" % vm)
            a("s_barrier")
        a(rds[0])
        ex(0, 2)
        dd(0)
        ex(2, 4)
        a(pv(q ^ 1, vprev, 1))
        a(rds[1])
        ex(4, 6)
        dd(1)
        ex(6, 8)
        a(ls(q ^ 1, 1))
        dd(2)
        cv(0)
        dd(3)
        a(qk(sn, kn, q ^ 1, 1, R("v", sn, 16)))
        a(rds[2])
        ex(8, 10)
        dd(4)
        ex(10, 12)
        a(pv(q, vcur, 0))
        ex(12, 14)
        dd(5)
        ex(14, 16)
        a(ls(q, 0))
        dd(6)
        cv(1)

    def body(stages):
        for sidx in stages:
            for kt in range(4):
                i = sidx * 4 + kt
                last = kt == 3
                slot(2 * i, i, vm=((AT_NS - 2) * GN + 1) if last else None, dma_slot=(sidx % AT_NS) if last else None)
                slot(2 * i + 1, i)
    a("s_mov_b32 s31, 5")
    a.label("L_at_loop")
    body(range(3))
    a("s_sub_u32 s31, s31, 1")
    a("s_cmp_lg_u32 s31, 0")
    a("s_cbranch_scc1 L_at_loop")
    body([0])
    a("s_waitcnt lgkmcnt(0)")
    a(pv(1, VF[1], 1))
    a(ls(1, 1))
    a("s_nop 15")
    stamp(a, 2)
    a("s_mul_i32 s17, s13, %d" % ACT_MT)
    a("s_lshl_b32 s19, s12, 11")
    a("s_add_u32 s33, s17, s19")
    for q in range(2):
        a("v_mov_b32 v%d, 0" % T)
        for e in range(16):
            a("v_fma_f32 v%d, v%d, 0, v%d" % (T, O[q] + e, T))
        a("v_add_f32 v%d, v%d, v%d" % (T, T, L[q]))
        a("v_mov_b32 v%d, 0x%x" % (T + 1, f32(2.0 ** 64)))
        a("v_mov_b32 v%d, 0x%x" % (T + 2, f32(2.0 ** -64)))
        a("v_cmp_nlt_f32 vcc, v%d, v%d" % (T, T + 1))
        a("v_cmp_ngt_f32 s[34:35], v%d, v%d" % (T, T + 2))
        a("s_nop 1")
        a("s_or_b64 vcc, vcc, s[34:35]")
        if not os.environ.get("AT_DIAG"):
            a("s_cbranch_scc1 L_at_slow%d" % q)
        a.label("L_at_fin%d" % q)
        a("v_rcp_f32 v%d, v%d" % (T, L[q]))
        a("s_nop 0")
        for e in range(16):
            a("v_mul_f32 v%d, v%d, v%d" % (O[q] + e, O[q] + e, T))
        for e in range(8):
            a("v_cvt_pk_bf16_f32 v%d, v%d, v%d" % (O[q] + e, O[q] + 2 * e, O[q] + 2 * e + 1))
        a("buffer_store_dwordx4 %s, v1, s[24:27], s33 offen" % R("v", O[q], 4))
        a("buffer_store_dwordx4 %s, v1, s[24:27], s33 offen offset:1024" % R("v", O[q] + 4, 4))
        if q == 0:
            a("s_add_u32 s33, s33, %d" % ACT_MT)
    stamp(a, 3)
    stamp_out(a, "at", 5, 14)
    a.label("L_at_end")
    a("s_endpgm")
    M = NEGM
    for q in range(2):
        a.label("L_at_slow%d" % q)
        a("""
        s_waitcnt vmcnt(0) lgkmcnt(0)
        s_lshl_b32 s32, s14, 12
        s_add_u32 s32, s32, %d           ; private lds base
        v_subrev_u32 v8, s18, v2         ; dma voffsets without the wave's tile offset
        v_subrev_u32 v9, s18, v3
        v_subrev_u32 v10, s18, v6
        v_add_u32 v11, s32, v1           ; K read addr
        v_mov_b32 v12, v4
        v_mov_b32 v13, v5
        v_add_u32 v4, s32, v4
        v_add_u32 v5, s32, v5
        v_mov_b32 v%d, 0xff800000        ; m = -inf
        s_mov_b32 s30, 0
        """ % (AT_PRIV, M))
        for e in range(16):
            a("v_mov_b32 v%d, 0" % (O[q] + e))
        for e in range(4):
            a("v_mov_b32 v%d, 0" % (L[q] + e))
        a.label("L_at_sloop%d" % q)
        a("""
        s_mov_b32 m0, s32
        s_nop 0
        buffer_load_dwordx4 v8, s[20:23], s30 offen lds
        buffer_load_dwordx4 v8, s[20:23], s30 offen offset:1024 lds
        s_add_u32 m0, s32, 2048
        s_nop 0
        buffer_load_dwordx4 v9, s[20:23], s30 offen lds
        buffer_load_dwordx4 v10, s[20:23], s30 offen offset:1024 lds
        s_waitcnt vmcnt(0)
        """)
        a(kread(KF[0], 0, 0, areg=11))
        a(kread(KF[0], 0, 1, areg=11))
        for u in range(2):
            for rd in range(2):
                a(vread(VF[0], 2048, u, rd))
        a("s_waitcnt lgkmcnt(0)")
        sc = SB[0]
        a(qk(sc, KF[0], q, 0, "0"))
        a(qk(sc, KF[0], q, 1, R("v", sc, 16)))
        a("s_nop 15")
        rowmax(sc, T)
        crossmax(T)
        a("v_max_f32 v%d, v%d, v%d" % (T, T, M))
        a("v_mov_b32 v%d, 0xff800000" % (T + 1))
        a("v_cmp_eq_f32 vcc, v%d, v%d" % (T, T + 1))
        a("s_nop 1")
        a("v_cndmask_b32 v%d, v%d, 0, vcc" % (T + 2, T))
        a("v_sub_f32 v%d, v%d, v%d" % (T + 3, M, T + 2))
        a("v_exp_f32 v%d, v%d" % (T + 3, T + 3))
        a("v_mov_b32 v%d, v%d" % (M, T))
        for e in range(16):
            a("v_sub_f32 v%d, v%d, v%d" % (sc + e, sc + e, T + 2))
        for e in range(16):
            a("v_exp_f32 v%d, v%d" % (sc + e, sc + e))
        for e in range(16):
            a("v_mul_f32 v%d, v%d, v%d" % (O[q] + e, O[q] + e, T + 3))
        for e in range(4):
            a("v_mul_f32 v%d, v%d, v%d" % (L[q] + e, L[q] + e, T + 3))
        for u in range(2):
            for e in range(4):
                a("v_cvt_pk_bf16_f32 v%d, v%d, v%d" % (P + 4 * u + e, sc + 8 * u + 2 * e, sc + 8 * u + 2 * e + 1))
        a("s_nop 1")
        a(pv(q, VF[0], 0))
        a(pv(q, VF[0], 1))
        a(ls(q, 0))
        a(ls(q, 1))
        a("s_nop 15")
        a("s_add_u32 s30, s30, 2048")
        a("s_cmp_lt_u32 s30, 0x20000")
        a("s_cbranch_scc1 L_at_sloop%d" % q)
        a("v_mov_b32 v4, v12")
        a("v_mov_b32 v5, v13")
        a("s_branch L_at_fin%d" % q)
    kernel_desc(a, name, 180, 180, 56)
    return "; @launch kernel=%s grid=(256,1,1) block=(256,1,1) lds=%d" % (name, AT_LDS)


G2_NS = 8
G2_LDS = G2_NS * 16384
WS_PART = 40 << 20
PART_BYTES = 128 * 65536
WS_FLAG = 50 << 20
FLAG_BYTES = 128 * 128
H_PERM = "p16"
G2_TA, G2_TB = 32, 40


G2_MAPS = {
    "8x4": """s_bfe_u32 s12, s3, 0x10001
    s_lshl_b32 s12, s12, 3
    s_lshr_b32 s18, s17, 2
    s_add_u32 s12, s12, s18
    s_and_b32 s13, s3, 1
    s_lshl_b32 s13, s13, 2
    s_and_b32 s18, s17, 3
    s_add_u32 s13, s13, s18""",
    "4x8": """s_and_b32 s12, s3, 3
    s_lshl_b32 s12, s12, 2
    s_lshr_b32 s18, s17, 3
    s_add_u32 s12, s12, s18
    s_and_b32 s13, s17, 7""",
    "mix": """s_and_b32 s15, s17, 1
    s_lshr_b32 s17, s17, 1
    s_lshr_b32 s12, s3, 1
    s_lshl_b32 s12, s12, 2
    s_lshr_b32 s18, s17, 2
    s_add_u32 s12, s12, s18
    s_and_b32 s13, s3, 1
    s_lshl_b32 s13, s13, 2
    s_and_b32 s18, s17, 3
    s_add_u32 s13, s13, s18""",
}
G2_MAP = G2_MAPS[os.environ.get("G2_MAP", "8x4")]


def rowbase(perm, g, rd):
    return 16 * (g >> 1) + 4 * (g & 1) + 8 * rd if perm == "p32" else 4 * g + 16 * rd


def gen_gemm2(a):
    name = "gemm2_kernel"
    kernel_head(a, name)
    ACTR, WF, XR = 32, 160, 224
    a("""
    s_cmp_ge_u32 s2, 256
    s_cbranch_scc1 L_g2_end
    s_load_dwordx2 s[4:5], s[0:1], %d
    s_load_dwordx2 s[6:7], s[0:1], %d
    s_load_dwordx2 s[8:9], s[0:1], %d
    s_load_dwordx2 s[10:11], s[0:1], %d
    s_load_dwordx2 s[40:41], s[0:1], %d
    v_lshrrev_b32 v1, 6, v0
    s_and_b32 s3, s2, 7
    v_readfirstlane_b32 s14, v1      ; wave id
    s_lshr_b32 s17, s2, 3            ; i
    s_lshr_b32 s15, s3, 2            ; type: 0 = A, 1 = B
    %s
    s_and_b32 s16, s14, 1            ; kh
    s_lshr_b32 s19, s14, 1           ; mh
    v_and_b32 v0, 63, v0
    v_lshlrev_b32 v1, 4, v0
    s_waitcnt lgkmcnt(0)
    """ % (KA_WO, KA_WD, KA_X, KA_WS, KA_OUT, G2_MAP))
    stamp(a, 0)
    srd(a, 20, 10, 11, ACT_BYTES, WS_ACT)
    srd(a, 28, 8, 9, S * D * 2)
    srd(a, 32, 40, 41, S * D * 2)
    srd(a, 44, 10, 11, PART_BYTES, WS_PART)
    srd(a, 48, 10, 11, FLAG_BYTES, WS_FLAG)
    a("""
    ; W SRD: A starts on wo, B on w_down (row 1024)
    s_cmp_eq_u32 s15, 0
    s_cselect_b32 s24, s4, s6
    s_cselect_b32 s25, s5, s7
    s_mov_b32 s17, 0x%x
    s_cselect_b32 s26, 0x%x, s17
    s_mov_b32 s27, 0x00020000
    s_cselect_b32 s37, 0, 0x%x       ; W soffset
    s_cselect_b32 s36, 0, 0x%x       ; act soffset
    s_cselect_b32 s30, s30, 0        ; x only for A (B reads zeros)
    s_cselect_b32 s39, %d, %d        ; trips with full prefetch
    ; act voffsets: local m32 tile 0 (kept) = 2mh + kh ; local 1 (sent) = 2mh + (kh^1)
    v_lshrrev_b32 v4, 4, v0          ; g
    v_lshlrev_b32 v4, 9, v4
    v_and_b32 v5, 15, v0
    v_lshl_add_u32 v4, v5, 4, v4     ; g*512 + m*16
    s_lshl_b32 s17, s12, 2
    s_lshl_b32 s18, s19, 1
    s_add_u32 s17, s17, s18
    s_add_u32 s42, s17, s16          ; kept global m32 tile
    s_xor_b32 s43, s42, 1
    s_lshl_b32 s18, s16, 11          ; kh*2048
    s_mul_i32 s17, s42, %d
    s_add_u32 s17, s17, s18
    v_add_u32 v2, s17, v4
    s_mul_i32 s17, s43, %d
    s_add_u32 s17, s17, s18
    v_add_u32 v3, s17, v4
    s_lshl_b32 s38, s14, 12          ; wave lds dma base
    """ % (F * D * 2, D * D * 2, (G2_TA * 64 - D) * 2048, G2_TA * 4096, G2_TA // 8 - 1, G2_TB // 8 - 1, ACT_MT, ACT_MT))
    a("""
    v_lshrrev_b32 v8, 4, v0          ; r
    v_bfe_u32 v9, v0, 1, 3           ; u'
    v_and_b32 v10, 1, v0
    s_lshl_b32 s17, s13, 8           ; nb*256
    s_lshl_b32 s18, s19, 16
    s_add_u32 s17, s17, s18
    v_lshlrev_b32 v11, 11, v8        ; r*2048
    v_add_u32 v11, s17, v11
    """)
    for g in range(4):
        a("v_xor_b32 v12, v9, v8")
        if g & 1:
            a("v_xor_b32 v12, 4, v12")
        a("v_lshl_add_u32 v12, v12, 1, v10")
        a("v_lshl_add_u32 v12, v12, 4, v11")
        for perm, dst in (("p32", 4 + g), (H_PERM, 28 + g)):
            r0, r1 = rowbase(perm, g, 0) * 2048 - g * 1024, rowbase(perm, g, 1) * 2048 - g * 1024
            a("s_cmp_eq_u32 s16, 0")
            a("s_mov_b32 s17, %d" % r1)
            a("s_cselect_b32 s17, %d, s17" % r0)
            a("v_add_u32 v%d, s17, v12" % dst)
    a("s_cmp_eq_u32 s15, 0")
    a("s_cbranch_scc1 L_g2_a0")
    for g in range(4):
        a("v_mov_b32 v%d, v%d" % (4 + g, 28 + g))
    a.label("L_g2_a0")

    def wdma(slot):
        out = [["s_add_u32 m0, s38, %d" % (slot * 16384)]]
        for g in range(4):
            out.append(["buffer_load_dwordx4 v%d, s[24:27], s37 offen offset:%d lds" % (4 + g, 1024 * g)])
        out[-1].append("s_add_u32 s37, s37, %d" % (64 * 2048))
        return out

    def areg(slot, tm):
        return ACTR + slot * 16 + tm * 4

    def aloads(slot):
        out = [["buffer_load_dwordx4 %s, v%d, s[20:23], s36 offen offset:%d" % (R("v", areg(slot, tm), 4), 2 + (tm >> 1), 256 * (tm & 1))]
               for tm in range(4)]
        out[-1].append("s_add_u32 s36, s36, 4096")
        return out

    for st in range(G2_NS - 1):
        for i, g in enumerate(wdma(st) + aloads(st)):
            for s_ in g:
                a(s_)
            if i == 0:
                a("s_nop 0")
    a("""
    v_lshrrev_b32 v24, 4, v0         ; g
    v_bfe_u32 v25, v0, 2, 2          ; r
    v_lshl_add_u32 v24, v24, 2, v25  ; 4g + r
    v_and_b32 v25, 7, v24            ; rho & 7
    v_lshlrev_b32 v24, 8, v24
    v_and_b32 v26, 3, v0
    v_lshl_add_u32 v24, v26, 3, v24
    s_lshl_b32 s17, s16, 13
    v_add_u32 v24, s17, v24
    """)
    for tn in range(8):
        a("v_xor_b32 v26, %d, v25" % tn)
        a("v_lshl_add_u32 v%d, v26, 5, v24" % (8 + tn))
        a("v_add_u32 v%d, 0x10000, v%d" % (16 + tn, 8 + tn))
    a("""
    s_lshl_b32 s17, s42, 16
    s_lshl_b32 s18, s13, 8
    s_add_u32 s17, s17, s18
    v_and_b32 v24, 15, v0
    v_lshlrev_b32 v24, 11, v24
    v_bfe_u32 v25, v0, 4, 1
    v_lshlrev_b32 v25, 5, v25
    v_lshrrev_b32 v26, 5, v0
    v_lshlrev_b32 v26, 4, v26
    v_add3_u32 v24, v24, v25, v26
    v_add_u32 v24, s17, v24
    v_add_u32 v25, 0x8000, v24       ; rows +16
    """)
    for k in range(128):
        a("v_accvgpr_write_b32 a%d, 0" % k)

    def wf(st, tn):
        return WF + st * 32 + tn * 4

    def wreads(slot, st):
        out = []
        for tn in range(8):
            for rd in range(2):
                off = (slot % 4) * 16384 + rd * 4096
                out.append("ds_read_b64_tr_b16 %s, v%d offset:%d" % (R("v", wf(st, tn) + 2 * rd, 2), 8 + 8 * (slot // 4) + tn, off))
        return out

    def accr(tm, tn):
        return (tm * 8 + tn) * 4

    xloads = [["buffer_load_dwordx4 %s, v%d, s[28:31], 0 offen offset:%d" % (R("v", XR + (tm * 4 + p) * 4, 4), 24 + tm, p * 64)]
              for tm in range(2) for p in range(4)]

    def stage(slot, prefetch, vm, last=False, extra=None):
        st = slot & 1
        mf = []
        fl = {-1: ["s_waitcnt vmcnt(%d) lgkmcnt(0)" % vm]}
        for tm in range(4):
            for tn in range(8):
                r = accr(tm, tn)
                mf.append("v_mfma_f32_16x16x32_bf16 %s, %s, %s, %s" % (
                    R("a", r, 4), R("v", wf(st, tn), 4), R("v", areg(slot, tm), 4), R("a", r, 4)))
        if not last:
            fl[1] = ["s_barrier"]
            trg = [g for g in range(2, 26) if g % 4 != 3]
            for g, r in zip(trg, wreads((slot + 1) % G2_NS, st ^ 1)):
                fl.setdefault(g, []).append(r)
        ps = (slot + G2_NS - 1) % G2_NS
        vm_ops = (wdma(ps) + aloads(ps)) if prefetch else (extra or [])
        if os.environ.get("G2_NOADV"):
            vm_ops = [[s_ for s_ in d if not (s_.startswith("s_add_u32 s37") or s_.startswith("s_add_u32 s36"))] for d in vm_ops]
        if os.environ.get("G2_NOMFMA"):
            mf = ["s_nop 0"] * len(mf)
        if os.environ.get("G2_NOBAR"):
            fl[1] = []
        if os.environ.get("G2_NOVM"):
            vm_ops = []
        if os.environ.get("G2_NOTR"):
            for g in range(2, 18):
                fl[g] = []
        pos = [2, 3, 7, 11, 15, 19, 23, 27, 30] if len(vm_ops) == 9 else [3, 7, 11, 15, 19, 23, 27, 30]
        for g, d in zip(pos, vm_ops):
            fl.setdefault(g, []).extend(d)
        interleave(a, mf, fl)

    a("s_waitcnt vmcnt(52)")
    a("s_barrier")
    stamp(a, 1)
    for r in wreads(0, 0):
        a(r)
    a("s_mov_b32 s52, 0")
    a.label("L_g2_loop")
    for slot in range(G2_NS):
        if slot == 1:
            a("""
            s_cmp_eq_u32 s52, 1
            s_cbranch_scc0 L_g2_nosw
            s_cmp_eq_u32 s15, 0
            s_cbranch_scc0 L_g2_nosw
            s_mov_b32 s24, s6
            s_mov_b32 s25, s7
            s_mov_b32 s26, 0x%x
            s_mov_b32 s37, 0
            """ % (F * D * 2))
            for g in range(4):
                a("v_mov_b32 v%d, v%d" % (4 + g, 28 + g))
            a.label("L_g2_nosw")
        stage(slot, True, 44)
    a("""
    s_add_u32 s52, s52, 1
    s_cmp_lt_u32 s52, s39
    s_cbranch_scc1 L_g2_loop
    """)
    for j in range(G2_NS):
        vm = 44 if j <= 1 else (4 + 8 * (6 - j) + 8 if j <= 6 else 8)
        stage(j, j == 0, vm, last=(j == G2_NS - 1), extra=(xloads if j == 1 else None))
    stamp(a, 2)
    a("""
    s_nop 7
    s_barrier
    s_xor_b32 s17, s14, 1
    s_lshl_b32 s17, s17, 14
    v_add_u32 v26, s17, v1
    s_lshl_b32 s17, s14, 14
    v_add_u32 v27, s17, v1
    """)
    for q in range(16):
        a("ds_write_b128 v26, %s offset:%d" % (R("a", 64 + 4 * q, 4), q * 1024))
    T = ACTR
    for e in range(64):
        a("v_accvgpr_read_b32 v%d, a%d" % (T + e, e))
    a("s_waitcnt vmcnt(0)")
    for blk in range(8):
        x = XR + 4 * blk
        a("v_permlane16_swap_b32 v%d, v%d" % (x, x + 2))
        a("v_permlane16_swap_b32 v%d, v%d" % (x + 1, x + 3))
    a("s_nop 1")
    for d in range(32):
        a("v_lshlrev_b32 v%d, 16, v%d" % (WF, XR + d))
        a("v_and_b32 v%d, 0xffff0000, v%d" % (WF + 1, XR + d))
        a("v_add_f32 v%d, v%d, v%d" % (T + 2 * d, T + 2 * d, WF))
        a("v_add_f32 v%d, v%d, v%d" % (T + 2 * d + 1, T + 2 * d + 1, WF + 1))
    a("s_waitcnt lgkmcnt(0)")
    a("s_barrier")
    for q in range(16):
        a("ds_read_b128 %s, v27 offset:%d" % (R("v", T + 64 + 4 * q, 4), q * 1024))
    a("""
    s_lshl_b32 s17, s12, 3
    s_add_u32 s17, s17, s13          ; pair
    s_lshl_b32 s53, s17, 7
    s_lshl_b32 s17, s17, 16
    s_lshl_b32 s18, s14, 14
    s_add_u32 s54, s17, s18
    """)
    for q in range(16):
        a("s_waitcnt lgkmcnt(%d)" % (15 - q))
        for e in range(4):
            a("v_add_f32 v%d, v%d, v%d" % (T + 4 * q + e, T + 4 * q + e, T + 64 + 4 * q + e))
    a("s_cmp_eq_u32 s15, 0")
    a("s_cbranch_scc0 L_g2_b")
    for q in range(16):
        if q % 4 == 0 and q:
            a("s_add_u32 s54, s54, 4096")
        a("buffer_store_dwordx4 %s, v1, s[44:47], s54 offen offset:%d sc1" % (R("v", T + 4 * q, 4), (q % 4) * 1024))
    a("""
    s_waitcnt vmcnt(0)
    s_barrier
    s_cmp_eq_u32 s14, 0
    s_cbranch_scc0 L_g2_fin
    v_mov_b32 v26, 1
    v_mov_b32 v27, 0
    s_mov_b64 exec, 1
    buffer_store_dword v26, v27, s[48:51], s53 offen sc1
    s_mov_b64 exec, -1
    s_branch L_g2_fin
    L_g2_b:
    v_mov_b32 v27, 0
    L_g2_poll:
    buffer_load_dword v26, v27, s[48:51], s53 offen sc1
    s_waitcnt vmcnt(0)
    v_readfirstlane_b32 s17, v26
    s_cmp_eq_u32 s17, 1
    s_cbranch_scc1 L_g2_got
    s_sleep 2
    s_branch L_g2_poll
    L_g2_got:
    """)
    for q in range(16):
        if q % 4 == 0 and q:
            a("s_add_u32 s54, s54, 4096")
        a("buffer_load_dwordx4 %s, v1, s[44:47], s54 offen offset:%d sc1" % (R("v", T + 64 + 4 * q, 4), (q % 4) * 1024))
    for q in range(16):
        a("s_waitcnt vmcnt(%d)" % (15 - q))
        for e in range(4):
            a("v_add_f32 v%d, v%d, v%d" % (T + 4 * q + e, T + 4 * q + e, T + 64 + 4 * q + e))
        for e in range(2):
            a("v_cvt_pk_bf16_f32 v%d, v%d, v%d" % (XR + 2 * q + e, T + 4 * q + 2 * e, T + 4 * q + 2 * e + 1))
    a("s_nop 1")
    for blk in range(8):
        x = XR + 4 * blk
        a("v_permlane16_swap_b32 v%d, v%d" % (x, x + 2))
        a("v_permlane16_swap_b32 v%d, v%d" % (x + 1, x + 3))
    a("s_nop 1")
    for tm in range(2):
        for p in range(4):
            a("buffer_store_dwordx4 %s, v%d, s[32:35], 0 offen offset:%d" % (R("v", XR + (tm * 4 + p) * 4, 4), 24 + tm, p * 64))
    a.label("L_g2_fin")
    stamp(a, 3)
    stamp_out(a, "g2", 5, 14)
    a.label("L_g2_end")
    a("s_endpgm")
    kernel_desc(a, name, 256 + 128, 256, 64)
    return "; @launch kernel=%s grid=(256,1,1) block=(256,1,1) lds=%d" % (name, G2_LDS)


HEADER = """; Kernarg layout for this problem (80 bytes, ptrs only, base s[0:1]):
"""


def main():
    out = sys.argv[1] if len(sys.argv) > 1 else "cdna_kernels/%s.s" % NAME
    a = Asm()
    a.lines.append('.amdgcn_target "amdgcn-amd-amdhsa--gfx950"')
    launches = []
    gens = [gen_ln, gen_gemm1]
    if "gen_attn" in globals():
        gens.append(globals()["gen_attn"])
    if "gen_gemm2" in globals():
        gens.append(globals()["gen_gemm2"])
    for g in gens:
        launches.append(g(a))
    open(out, "w").write(HEADER + "\n".join(launches) + "\n" + a.text())


if __name__ == "__main__":
    main()
```

```python
import sys, struct, math, os

NAME = "parallel_sum__mha_block__glu_gated_glu__prompt"
S, D, H, DH, F = 2048, 1024, 32, 32, 3584
KA_X, KA_WQKV, KA_WO, KA_BX, KA_WG, KA_WU, KA_WD, KA_OUT, KA_DBG, KA_WS = [8 * i for i in range(10)]
WS_XN = 0
XN_BYTES = 64 * 128 * 512
WS_QKV = 4 << 20
QKV_BYTES = 96 * 64 * 2048
WS_ACT = 16 << 20
ACT_MT = 576 * 512
ACT_BYTES = 64 * ACT_MT
WS_PART = 40 << 20
PART_BYTES = 128 * 65536
WS_FLAG = 50 << 20
FQ, FH, FO, FP, FX, FG = 0, 4096, 8192, 12288, 28672, 29696
FLAG_BYTES = 32768
STAMP = int(os.environ.get("STAMP", "0"))
ENV = os.environ.get


def f32(x):
    return struct.unpack("<I", struct.pack("<f", x))[0]


class Asm:
    def __init__(self):
        self.lines = []

    def __call__(self, s):
        for ln in s.split("\n"):
            ln = ln.strip()
            if ln:
                self.lines.append(("" if ln.endswith(":") else "    ") + ln)

    def label(self, l):
        self.lines.append(l + ":")

    def text(self):
        return "\n".join(self.lines) + "\n"


def kernel_head(a, name):
    a.lines += [".text", ".globl %s" % name, ".p2align 8", ".type %s,@function" % name]
    a.label(name)


def kernel_desc(a, name, vgpr, accum, sgpr=102):
    a.lines += ['.section .rodata,"a"', ".p2align 6", ".amdhsa_kernel %s" % name,
                "  .amdhsa_next_free_vgpr %d" % vgpr, "  .amdhsa_next_free_sgpr %d" % sgpr,
                "  .amdhsa_accum_offset %d" % accum, "  .amdhsa_group_segment_fixed_size 0",
                "  .amdhsa_kernarg_size 80", "  .amdhsa_user_sgpr_count 2",
                "  .amdhsa_user_sgpr_kernarg_segment_ptr 1", "  .amdhsa_system_sgpr_workgroup_id_x 1",
                "  .amdhsa_float_denorm_mode_32 3", ".end_amdhsa_kernel"]


def srd(a, d, lo, hi, nbytes, off=0):
    if off:
        a("s_add_u32 s%d, s%d, 0x%x" % (d, lo, off))
        a("s_addc_u32 s%d, s%d, 0" % (d + 1, hi))
    else:
        a("s_mov_b32 s%d, s%d" % (d, lo))
        a("s_mov_b32 s%d, s%d" % (d + 1, hi))
    a("s_mov_b32 s%d, 0x%x" % (d + 2, nbytes))
    a("s_mov_b32 s%d, 0x00020000" % (d + 3))


def R(kind, base, n=1):
    return "%s%d" % (kind, base) if n == 1 else "%s[%d:%d]" % (kind, base, base + n - 1)


def interleave(a, mfmas, fillers):
    for s in fillers.get(-1, []):
        a(s)
    for i, m in enumerate(mfmas):
        a(m)
        for s in fillers.get(i, []):
            a(s)


def stamp_init(a, kidx, areg):
    if STAMP:
        srd(a, 96, 10, 11, 1 << 20, (64 << 20) + (kidx << 20))
        a("s_lshl_b32 s95, s2, 2")
        a("s_add_u32 s95, s95, s14")
        a("s_lshl_b32 s95, s95, 7")
        global STAMP_A
        STAMP_A = areg


def stamp(a, i):
    if STAMP:
        a("s_memtime s[100:101]")
        a("s_memrealtime s[78:79]")
        a("s_waitcnt lgkmcnt(0)")
        a("v_accvgpr_write_b32 a%d, s100" % STAMP_A)
        a("v_accvgpr_write_b32 a%d, s78" % (STAMP_A + 1))
        a("s_nop 1")
        a("buffer_store_dwordx2 a[%d:%d], off, s[96:99], s95 offset:%d" % (STAMP_A, STAMP_A + 1, 8 * i))
        a("s_nop 1")


def ln_loads(a, xs, VB):
    V = VB
    a("""
    v_and_b32 v{V1}, 63, v0            ; lane
    v_lshrrev_b32 v{V2}, 6, v0         ; wave
    v_and_b32 v{V3}, 7, v{V1}          ; row in block
    v_lshrrev_b32 v{V4}, 3, v{V1}      ; kq
    v_lshl_add_u32 v{V5}, v{V2}, 4, v{V4}   ; pi (i=0) = wave*16 + kq ; i=1 -> +8
    v_add_u32 v{V6}, s3, v{V3}         ; global row
    v_lshlrev_b32 v{V7}, 11, v{V6}
    v_lshrrev_b32 v{V8}, 1, v{V5}      ; kappa
    v_and_b32 v{V9}, 1, v{V5}          ; p
    v_lshl_add_u32 v{V7}, v{V8}, 6, v{V7}
    v_lshl_add_u32 v{V7}, v{V9}, 4, v{V7}
    buffer_load_dwordx4 v[{L0}:{L0e}], v{V7}, s[{xs}:{xe}], 0 offen
    buffer_load_dwordx4 v[{L1}:{L1e}], v{V7}, s[{xs}:{xe}], 0 offen offset:32
    buffer_load_dwordx4 v[{L2}:{L2e}], v{V7}, s[{xs}:{xe}], 0 offen offset:256
    buffer_load_dwordx4 v[{L3}:{L3e}], v{V7}, s[{xs}:{xe}], 0 offen offset:288
    v_lshrrev_b32 v{V8}, 5, v{V6}
    v_lshlrev_b32 v{V8}, 6, v{V8}
    v_add_u32 v{V8}, v{V8}, v{V5}
    v_lshlrev_b32 v{V8}, 10, v{V8}
    v_and_b32 v{V9}, 31, v{V6}
    v_lshl_add_u32 v{V9}, v{V9}, 4, v{V8}   ; store offset
    v_lshlrev_b32 v{V11}, 4, v{V3}     ; lds read addr: row*16
    v_lshl_add_u32 v{V12}, v{V2}, 2, v{V11} ; lds write addr
    """.format(xs=xs, xe=xs + 3, L0=V + 16, L0e=V + 19, L1=V + 20, L1e=V + 23, L2=V + 24, L2e=V + 27, L3=V + 28, L3e=V + 31,
               **{"V%d" % i: V + i for i in range(16)}))


def ln_compute(a, os_, VB, lds, st_flags=""):
    V = VB
    X = V + 32
    T = V + 64
    for i in range(16):
        a("v_lshlrev_b32 v%d, 16, v%d" % (X + 2 * i, V + 16 + i))
        a("v_and_b32 v%d, 0xffff0000, v%d" % (X + 2 * i + 1, V + 16 + i))

    def reduce_rows(src, off):
        a("""
        s_nop 1
        v_add_f32_dpp v{s}, v{s}, v{s} row_ror:8 row_mask:0xf bank_mask:0xf
        v_mov_b32 v{t}, v{s}
        s_nop 1
        v_permlane16_swap_b32 v{s}, v{t}
        s_nop 1
        v_add_f32 v{s}, v{s}, v{t}
        v_mov_b32 v{t}, v{s}
        s_nop 1
        v_permlane32_swap_b32 v{s}, v{t}
        s_nop 1
        v_add_f32 v{s}, v{s}, v{t}
        ds_write_b32 v{w}, v{s} offset:{off}
        s_waitcnt lgkmcnt(0)
        s_barrier
        ds_read_b128 v[{q}:{q3}], v{r} offset:{off}
        s_waitcnt lgkmcnt(0)
        v_add_f32 v{q}, v{q}, v{q1}
        v_add_f32 v{q2}, v{q2}, v{q3}
        v_add_f32 v{s}, v{q}, v{q2}
        """.format(s=src, t=V + 14, w=V + 12, r=V + 11, off=off, q=T, q1=T + 1, q2=T + 2, q3=T + 3))
    M, Vr, Rc = V + 13, V + 15, V + 14
    a("v_add_f32 v%d, v%d, v%d" % (M, X, X + 1))
    a("v_add_f32 v%d, v%d, v%d" % (T, X + 2, X + 3))
    for i in range(4, 32, 2):
        a("v_add_f32 v%d, v%d, v%d" % (M, M, X + i))
        a("v_add_f32 v%d, v%d, v%d" % (T, T, X + i + 1))
    a("v_add_f32 v%d, v%d, v%d" % (M, M, T))
    reduce_rows(M, lds)
    a("v_mul_f32 v%d, 0x%x, v%d" % (M, f32(1.0 / D), M))
    a("v_mov_b32 v%d, 0" % Vr)
    a("v_mov_b32 v%d, 0" % (T + 4))
    for i in range(0, 32, 2):
        a("v_sub_f32 v%d, v%d, v%d" % (T, X + i, M))
        a("v_sub_f32 v%d, v%d, v%d" % (T + 1, X + i + 1, M))
        a("v_fmac_f32 v%d, v%d, v%d" % (Vr, T, T))
        a("v_fmac_f32 v%d, v%d, v%d" % (T + 4, T + 1, T + 1))
    a("v_add_f32 v%d, v%d, v%d" % (Vr, Vr, T + 4))
    reduce_rows(Vr, lds + 128)
    a("""
    v_mul_f32 v{v}, 0x{c:x}, v{v}        ; var
    v_cvt_pk_bf16_f32 v{m}, v{m}, v{v}   ; lo = mean bf16, hi = var bf16
    v_and_b32 v{v}, 0xffff0000, v{m}
    v_lshlrev_b32 v{m}, 16, v{m}         ; mean_bf
    v_add_f32 v{v}, 0x{e:x}, v{v}        ; + eps
    v_cvt_pk_bf16_f32 v{v}, v{v}, v{v}
    v_and_b32 v{v}, 0xffff0000, v{v}
    v_sqrt_f32 v{v}, v{v}
    s_nop 0
    v_cvt_pk_bf16_f32 v{v}, v{v}, v{v}
    v_and_b32 v{v}, 0xffff0000, v{v}     ; s (bf16)
    v_rcp_f32 v{r}, v{v}
    s_nop 0
    v_fma_f32 v{t}, -v{v}, v{r}, 1.0
    v_fma_f32 v{r}, v{r}, v{t}, v{r}
    """.format(v=Vr, m=M, r=Rc, t=T, c=f32(1.0 / D), e=f32(1e-5)))

    def dst(i):
        pc, d = i >> 2, i & 3
        pair, ab = pc >> 1, pc & 1
        return V + 16 + pair * 8 + (d >> 1) * 4 + ab * 2 + (d & 1)
    for i in range(16):
        x0, x1 = X + 2 * i, X + 2 * i + 1
        a("v_sub_f32 v%d, v%d, v%d" % (x0, x0, M))
        a("v_sub_f32 v%d, v%d, v%d" % (x1, x1, M))
        a("v_cvt_pk_bf16_f32 v%d, v%d, v%d" % (T, x0, x1))
        a("v_lshlrev_b32 v%d, 16, v%d" % (x0, T))
        a("v_and_b32 v%d, 0xffff0000, v%d" % (x1, T))
        for x in (x0, x1):
            a("v_mul_f32 v%d, v%d, v%d" % (T + 1, x, Rc))
            a("v_fma_f32 v%d, -v%d, v%d, v%d" % (T + 2, T + 1, Vr, x))
            a("v_fma_f32 v%d, v%d, v%d, v%d" % (x, T + 2, Rc, T + 1))
        a("v_cvt_pk_bf16_f32 v%d, v%d, v%d" % (dst(i), x0, x1))
    a("v_add_u32 v%d, 0x2000, v%d" % (V + 10, V + 9))
    for pair in range(2):
        for c in range(2):
            a("buffer_store_dwordx4 %s, v%d, s[%d:%d], 0 offen offset:%d%s" % (
                R("v", V + 16 + pair * 8 + c * 4, 4), V + 9 + pair, os_, os_ + 3, c * 512, st_flags))


def gen_ln(a):
    name = "ln_kernel"
    kernel_head(a, name)
    a("""
    s_cmp_ge_u32 s2, 256
    s_cbranch_scc1 L_ln_end
    s_load_dwordx2 s[4:5], s[0:1], %d
    s_load_dwordx2 s[10:11], s[0:1], %d
    s_load_dwordx2 s[16:17], s[0:1], %d
    s_load_dwordx2 s[18:19], s[0:1], %d
    s_load_dwordx2 s[20:21], s[0:1], %d
    v_lshrrev_b32 v1, 6, v0
    s_lshl_b32 s3, s2, 3            ; first row
    v_readfirstlane_b32 s14, v1
    s_waitcnt lgkmcnt(0)
    """ % (KA_X, KA_WS, KA_WQKV, KA_WG, KA_WU))
    stamp_init(a, 0, 0)
    stamp(a, 0)
    srd(a, 32, 4, 5, S * D * 2)
    srd(a, 36, 10, 11, XN_BYTES, WS_XN)
    srd(a, 40, 10, 11, FLAG_BYTES, WS_FLAG)
    ln_loads(a, 32, 0)
    a("""
    s_lshl_b32 s22, s2, 7
    v_lshlrev_b32 v70, 2, v0
    v_mov_b32 v71, 0
    v_cmp_gt_u32 vcc, 32, v0
    s_and_saveexec_b64 s[24:25], vcc
    s_cbranch_execz L_ln_nz
    buffer_store_dword v71, v70, s[40:43], s22 offen
    L_ln_nz:
    s_mov_b64 exec, s[24:25]
    """)
    if ENV("LN_PF", "1") == "1":
        a("""
        s_lshl_b32 s22, s2, 12
        v_lshlrev_b32 v70, 4, v0
        v_add_u32 v70, s22, v70
        """)
        for p, nb in ((16, 128 * 3 * D * 2), (18, 128 * F * 2), (20, 128 * F * 2)):
            srd(a, 24, p, p + 1, nb)
            a("buffer_load_dwordx4 v[72:75], v70, s[24:27], 0 offen")
        a("s_waitcnt vmcnt(3)")
    else:
        a("s_waitcnt vmcnt(0)")
    stamp(a, 1)
    ln_compute(a, 36, 0, 0)
    stamp(a, 2)
    a("""
    L_ln_end:
    s_endpgm
    """)
    kernel_desc(a, name, 80, 76, 102 if STAMP else 48)
    return "; @launch kernel=%s grid=(256,1,1) block=(256,1,1) lds=256" % name


def flag_set(a, fs, soff, vtmp, local_tag=None):
    a("v_mov_b32 v%d, 1" % vtmp)
    a("s_mov_b64 exec, 1")
    if local_tag:
        a("s_cmp_eq_u64 s[32:33], 0")
        a("s_cbranch_scc1 L_fl_%s" % local_tag)
    a("buffer_store_dword v%d, off, s[%d:%d], s%d sc1" % (vtmp, fs, fs + 3, soff))
    if local_tag:
        a("s_branch L_fld_%s" % local_tag)
        a.label("L_fl_%s" % local_tag)
        a("buffer_store_dword v%d, off, s[%d:%d], s%d" % (vtmp, fs, fs + 3, soff))
        a.label("L_fld_%s" % local_tag)
    a("s_mov_b64 exec, -1")


def flag_load(fs, soff, vdst, vaddr, n):
    return "buffer_load_dword%s %s, v%d, s[%d:%d], s%d offen sc1" % ("x2" if n == 2 else "", R("v", vdst, n), vaddr, fs, fs + 3, soff)


def flag_wait(a, tag, fs, soff, vdst, vaddr, n, vm, val="1"):
    a("s_waitcnt vmcnt(%d)" % vm)
    a("s_mov_b32 s19, 0x80000")
    a.label("L_fw_%s" % tag)
    if n == 2:
        a("v_and_b32 v%d, v%d, v%d" % (vdst, vdst, vdst + 1))
    a("v_cmp_ne_u32 vcc, %s, v%d" % (val, vdst))
    a("s_nop 1")
    a("s_cmp_eq_u64 vcc, 0")
    a("s_cbranch_scc1 L_fwd_%s" % tag)
    a("s_sleep 1")
    a(flag_load(fs, soff, vdst, vaddr, n))
    a("s_waitcnt vmcnt(0)")
    a("s_sub_u32 s19, s19, 1")
    a("s_cmp_lg_u32 s19, 0")
    a("s_cbranch_scc1 L_fw_%s" % tag)
    a.label("L_fwd_%s" % tag)


CODE_PF_N = 1 if ENV("CODE_PF", "1") == "1" else 0


def code_pf(a, tag, l0, l1, sd, vt, back=False):
    if not CODE_PF_N:
        return
    a("s_getpc_b64 s[%d:%d]" % (sd, sd + 1))
    a.label("L_pc_%s" % tag)
    if back:
        a("s_sub_u32 s%d, s%d, L_pc_%s - %s" % (sd, sd, tag, l0))
        a("s_subb_u32 s%d, s%d, 0" % (sd + 1, sd + 1))
    else:
        a("s_add_u32 s%d, s%d, %s - L_pc_%s" % (sd, sd, l0, tag))
        a("s_addc_u32 s%d, s%d, 0" % (sd + 1, sd + 1))
    a("s_mov_b32 s%d, %s - %s" % (sd + 2, l1, l0))
    a("s_mov_b32 s%d, 0x00020000" % (sd + 3))
    a("s_lshr_b32 s19, s2, 3")
    a("s_lshl_b32 s19, s19, 2")
    a("s_add_u32 s19, s19, s14")
    a("s_lshl_b32 s19, s19, 10")
    a("v_lshlrev_b32 v%d, 4, v0" % vt)
    a("buffer_load_dwordx4 a[232:235], v%d, s[%d:%d], s19 offen" % (vt, sd, sd + 3))


PFS = 80
G1_W = 16384
G1_COL = 10240
G1_STAGE = G1_W + 2 * G1_COL
G1_NST = 4
G1_SUB = {1: [("g", 0, 128), ("u", 4096, 128), ("q", 8192, 64)],
          2: [("g", 0, 64), ("u", 2048, 64), ("q", 4096, 192)]}
G1_TILES = {1: [(0, 0), (1, 0), (0, 1), (1, 1), (0, 2), (1, 2), (0, 3), (1, 3), (2, 0), (2, 1)],
            2: [(0, 0), (1, 0), (0, 1), (1, 1), (2, 0), (2, 1), (2, 2), (2, 3), (2, 4), (2, 5)]}
PF_ROW0 = 160
LNV = 32
LN_LDS = 0


def own_flags(a):
    a("""
    s_lshl_b32 s28, s3, 9
    s_lshr_b32 s17, s2, 3
    s_lshl_b32 s17, s17, 2
    s_add_u32 s17, s17, s14
    s_lshl_b32 s17, s17, 2
    s_add_u32 s29, s28, s17
    s_lshl_b32 s30, s13, 1
    s_add_u32 s30, s30, s15
    s_lshl_b32 s30, s30, 6           ; (mb*2 + (w>>1))*64
    s_lshl_b32 s17, s3, 3
    s_lshl_b32 s19, s12, 1
    s_add_u32 s17, s17, s19
    s_add_u32 s17, s17, s16          ; x*8 + jq*2 + (w&1)  == head*2 + (w&1)
    s_add_u32 s30, s30, s17
    s_lshl_b32 s30, s30, 2
    s_add_u32 s31, s30, %d
    s_add_u32 s30, s30, %d
    ; pair word: one per two workgroups (i, i^1) of a group
    s_lshr_b32 s17, s2, 4
    s_lshl_b32 s17, s17, 3
    s_add_u32 s17, s17, s3
    s_lshl_b32 s28, s17, 7
    s_add_u32 s28, s28, %d
    """ % (FO, FH, FP))


def phase_gemm1(a):
    a("""
    s_load_dwordx2 s[4:5], s[0:1], %d
    s_load_dwordx2 s[6:7], s[0:1], %d
    s_load_dwordx2 s[8:9], s[0:1], %d
    s_load_dwordx2 s[10:11], s[0:1], %d
    s_load_dwordx2 s[68:69], s[0:1], %d
    s_load_dwordx2 s[70:71], s[0:1], %d
    v_lshrrev_b32 v1, 6, v0
    s_lshl_b32 s3, s2, 3             ; first layernorm row
    v_readfirstlane_b32 s14, v1      ; wave id
    s_lshr_b32 s17, s2, 3
    s_and_b32 s12, s17, 3            ; jq
    s_lshr_b32 s13, s17, 2           ; mb
    s_lshr_b32 s15, s14, 1           ; wm
    s_and_b32 s16, s14, 1            ; wn
    s_waitcnt lgkmcnt(0)
    """ % (KA_WQKV, KA_WG, KA_WU, KA_WS, KA_X, KA_DBG))
    stamp_init(a, 1, 240)
    stamp(a, 0)
    srd(a, 64, 68, 69, S * D * 2)
    ln_loads(a, 64, LNV)
    a("""
    s_and_b32 s3, s2, 7
    v_and_b32 v0, 63, v0             ; lane
    s_lshl_b32 s17, s12, 1
    s_add_u32 s17, s17, s16
    s_lshr_b32 s18, s17, 2
    s_and_b32 s19, s17, 3
    s_cmp_eq_u32 s19, 3
    s_cbranch_scc1 L_g1_isv2
    s_sub_u32 s17, s17, s18          ; ai
    s_mul_i32 s19, s3, 6
    s_add_u32 s19, s19, s17          ; a
    s_lshl_b32 s62, s19, 6           ; f0 = 64 a
    s_lshl_b32 s19, s3, 2
    s_lshl_b32 s18, s17, 5
    s_add_u32 s18, s18, 3
    s_add_u32 s63, s17, 62
    s_cmp_lt_u32 s17, 2
    s_cselect_b32 s63, s18, s63
    s_add_u32 s63, s63, s19
    s_mov_b32 s77, 1
    s_branch L_g1_vd
    L_g1_isv2:
    s_lshl_b32 s19, s3, 1
    s_add_u32 s19, s19, s18          ; b
    s_lshl_b32 s62, s19, 5
    s_add_u32 s62, s62, 3072
    s_lshl_b32 s63, s18, 5
    s_lshl_b32 s19, s3, 2
    s_add_u32 s63, s63, s19
    s_mov_b32 s77, 2
    L_g1_vd:
    """)
    srd(a, 20, 10, 11, XN_BYTES, WS_XN)
    srd(a, 64, 10, 11, FLAG_BYTES, WS_FLAG)
    a("""
    ; publish which compute die this workgroup runs on (speed hint only) and clear the group's go word
    s_getreg_b32 s17, hwreg(HW_REG_XCC_ID, 0, 4)
    s_add_u32 s17, s17, 1
    v_mov_b32 v8, s17
    s_lshl_b32 s17, s3, 5
    s_lshr_b32 s18, s2, 3
    s_add_u32 s17, s17, s18
    s_lshl_b32 s17, s17, 2
    s_add_u32 s17, s17, %d
    s_lshl_b32 s74, s14, 20          ; waves 1..3: out of range -> dropped
    s_add_u32 s17, s17, s74
    s_mov_b64 exec, 1
    buffer_store_dword v8, off, s[64:67], s17 sc1
    v_mov_b32 v8, 0
    s_lshl_b32 s75, s13, 7
    s_add_u32 s75, s75, %d
    s_add_u32 s75, s75, s74
    buffer_store_dword v8, off, s[64:67], s75 sc1
    """ % (FX, FG))
    own_flags(a)
    a("s_add_u32 s28, s28, s74")
    for sreg in (29, 30, 31, 28):
        a("buffer_store_dword v8, off, s[64:67], s%d sc1" % sreg)
    a("s_mov_b64 exec, -1")
    a("""
    s_lshl_b32 s17, s13, 3
    s_lshl_b32 s18, s14, 1
    s_add_u32 s17, s17, s18          ; global m-tile
    s_lshl_b32 s17, s17, 16
    v_lshlrev_b32 v23, 4, v0         ; lane*16
    v_add_u32 v1, s17, v23
    v_add_u32 v2, 0x10000, v1
    s_mov_b32 s59, 0
    s_lshl_b32 s60, s14, 12
    s_mul_i32 s18, s16, %d
    s_add_u32 s18, s18, %d           ; column region base
    s_lshl_b32 s72, s62, 1
    s_lshl_b32 s73, s63, 6
    """ % (G1_COL, G1_W))
    a("s_lshl_b32 s17, s77, 1")
    a("s_add_u32 s17, s17, s15")
    for sel in (3, 4, 5):
        a("s_cmp_eq_u32 s17, %d" % sel)
        a("s_cbranch_scc1 L_g1_set%d" % sel)
    for sel in (2, 3, 4, 5):
        var, wm = sel >> 1, sel & 1
        if sel != 2:
            a.label("L_g1_set%d" % sel)
        instrs = []
        for (mat, off, rs) in G1_SUB[var]:
            for idx in range(rs * 32 // 1024):
                instrs.append((mat, off, rs, idx))
        for i, (mat, off, rs, idx) in enumerate(instrs[5 * wm: 5 * wm + 5]):
            sd = 24 + 4 * i
            p = {"q": 4, "g": 6, "u": 8}[mat]
            rowb = 3 * D * 2 if mat == "q" else F * 2
            a("s_mov_b32 s%d, s%d" % (sd, p))
            a("s_mov_b32 s%d, s%d" % (sd + 1, p + 1))
            a("s_mov_b32 s%d, 0x%x" % (sd + 2, D * rowb))
            a("s_mov_b32 s%d, %d" % (49 + i, 32 * rowb))
            a("s_add_u32 s%d, s18, %d" % (54 + i, off + idx * 1024))
            cpr = rs // 16
            a("v_add_u32 v8, %d, v0" % (idx * 64))
            if cpr == 12:
                a("v_mul_u32_u24 v9, 5462, v8")
                a("v_lshrrev_b32 v9, 16, v9")
                a("v_mul_u32_u24 v10, 12, v9")
                a("v_sub_u32 v10, v8, v10")
            else:
                a("v_lshrrev_b32 v9, %d, v8" % {8: 3, 4: 2}[cpr])
                a("v_and_b32 v10, %d, v8" % (cpr - 1))
            a("v_bfe_u32 v11, v9, 1, 2" if rs == 128 else "v_bfe_u32 v11, v9, 2, 1")
            a("v_lshlrev_b32 v11, 1, v11")
            a("v_xor_b32 v10, v10, v11")
            a("v_mul_u32_u24 v9, %d, v9" % rowb)
            a("v_lshlrev_b32 v10, 4, v10")
            a("v_add3_u32 v%d, v9, v10, s%d" % (3 + i, 73 if mat == "q" else 72))
        if sel != 5:
            a("s_branch L_g1_setd")
    a.label("L_g1_setd")
    for i in range(5):
        a("s_mov_b32 s%d, 0x00020000" % (24 + 4 * i + 3))
        a("s_mov_b32 s%d, 0" % (44 + i))
    srd(a, PFS, 6, 7, 0)
    srd(a, PFS + 4, 8, 9, 0)
    srd(a, PFS + 8, 4, 5, 0)
    for m in range(3):
        a("s_mov_b32 s%d, 0" % (PFS + 12 + m))
    a("s_lshl_b32 s17, s2, 2")
    a("s_add_u32 s17, s17, s14")
    a("s_lshl_b32 s17, s17, 10")
    a("v_add_u32 v23, s17, v23")

    def zero_acc(part):
        if part == 0:
            for k in range(88):
                a("v_accvgpr_write_b32 a%d, 0" % k)
        else:
            for k in range(7, 232):
                a("v_mov_b32 v%d, 0" % (24 + k))

    def pf(n):
        m = [0, 1, 2, 0, 1, 2, 0, 1][n % 8]
        return "buffer_load_dwordx4 a[232:235], v23, s[%d:%d], s%d offen\ns_add_u32 s%d, s%d, 0x100000" % (
            PFS + 4 * m, PFS + 4 * m + 3, PFS + 12 + m, PFS + 12 + m, PFS + 12 + m)

    def dma_list(slot):
        base = slot * G1_STAGE
        out = []
        for i in range(5):
            sd = 24 + 4 * i
            out.append("s_add_u32 m0, s%d, %d" % (54 + i, base))
            out.append("buffer_load_dwordx4 v%d, s[%d:%d], s%d offen lds\ns_add_u32 s%d, s%d, s%d" % (
                3 + i, sd, sd + 3, 44 + i, 44 + i, 44 + i, 49 + i))
        out += ["s_add_u32 m0, s60, %d" % base,
                "buffer_load_dwordx4 v1, s[20:23], s59 offen sc1 lds",
                "buffer_load_dwordx4 v1, s[20:23], s59 offen offset:1024 sc1 lds",
                "s_add_u32 m0, s60, %d" % (base + 2048),
                "buffer_load_dwordx4 v2, s[20:23], s59 offen sc1 lds",
                "buffer_load_dwordx4 v2, s[20:23], s59 offen offset:1024 sc1 lds\ns_add_u32 s59, s59, 2048"]
        return out + [pf(2 * slot), pf(2 * slot + 1)]

    for st in range(G1_NST):
        for s in dma_list(st)[:10]:
            a(s)
            if "m0" in s:
                a("s_nop 0")
    a("s_waitcnt vmcnt(%d)" % (6 + 5 * G1_NST))
    stamp(a, 12)
    ln_compute(a, 20, LNV, LN_LDS, " sc1")
    srd(a, PFS, 70, 71, 256)
    a("""
    s_waitcnt vmcnt(0)
    s_barrier
    """)
    stamp(a, 13)
    a("""
    s_cmp_lg_u32 s14, 0
    s_cbranch_scc1 L_x_others
    v_mov_b32 v8, 1
    s_lshl_b32 s17, s13, 5
    s_mov_b64 exec, 1
    buffer_atomic_add v8, off, s[%d:%d], s17 sc0 sc1
    s_mov_b64 exec, -1
    """ % (PFS, PFS + 3))
    zero_acc(0)
    a("""
    v_mov_b32 v9, 0
    s_waitcnt vmcnt(0)
    v_readfirstlane_b32 s17, v8
    s_cmp_eq_u32 s17, 31
    s_cbranch_scc0 L_x_poll
    """)
    flag_set(a, 64, 75, 8)
    zero_acc(1)
    a("s_branch L_x_done")
    a.label("L_x_poll")
    a(flag_load(64, 75, 10, 9, 1))
    zero_acc(1)
    flag_wait(a, "x", 64, 75, 10, 9, 1, 0)
    a("s_branch L_x_done")
    a.label("L_x_others")
    zero_acc(0)
    zero_acc(1)
    a.label("L_x_done")
    a("s_barrier")
    srd(a, PFS, 6, 7, 0)
    stamp(a, 14)
    for st in range(G1_NST):
        for s in dma_list(st)[10:16]:
            a(s)
            if "m0" in s:
                a("s_nop 0")
    a("s_mov_b32 s%d, 0x%x" % (PFS + 2, D * F * 2))
    a("s_mov_b32 s%d, 0x%x" % (PFS + 6, D * F * 2))
    a("s_mov_b32 s%d, 0x%x" % (PFS + 10, D * 3 * D * 2))
    a("s_mov_b32 s%d, %d" % (PFS + 12, PF_ROW0 * F * 2))
    a("s_mov_b32 s%d, %d" % (PFS + 13, PF_ROW0 * F * 2))
    a("s_mov_b32 s%d, %d" % (PFS + 14, PF_ROW0 * 3 * D * 2))
    srd(a, 64, 10, 11, QKV_BYTES, WS_QKV)
    WIN = 2 * G1_STAGE
    a("""
    v_lshrrev_b32 v10, 4, v0         ; g
    v_and_b32 v11, 15, v0            ; m
    v_lshlrev_b32 v22, 9, v10
    v_lshl_add_u32 v22, v11, 4, v22
    s_lshl_b32 s17, s15, 13
    v_add_u32 v8, s17, v22
    v_add_u32 v9, %d, v8
    """ % WIN)
    NV = 58

    def acc(tn, tm):
        k2 = 79 - (tn * 8 + tm)
        return ("v", 24 + 4 * k2) if k2 < NV else ("a", 4 * (k2 - NV))

    def wfrag(st, tn):
        return 88 + 72 * st + 4 * tn

    def xfrag(st, tm):
        return 88 + 72 * st + 40 + 4 * tm

    def addr_setup(var):
        amap = {}
        a("""
        v_lshrrev_b32 v24, 4, v0
        v_bfe_u32 v25, v0, 2, 2
        v_lshl_add_u32 v26, v24, 2, v25
        v_and_b32 v27, 3, v0
        v_lshlrev_b32 v27, 3, v27
        v_add_u32 v27, s18, v27
        """)
        reg = 10
        done = {}
        for si, (mat, off, rs) in enumerate(G1_SUB[var]):
            nun = rs // 32
            nreg = 4 if rs == 128 else 2
            if rs not in done:
                done[rs] = reg
                a("v_bfe_u32 v28, v26, 1, 2" if rs == 128 else "v_and_b32 v28, 1, v24")
                a("v_mul_u32_u24 v29, %d, v26" % rs)
                a("v_add_u32 v29, v29, v27")
                for u in range(nreg):
                    a("v_xor_b32 v30, %d, v28" % u)
                    a("v_lshl_add_u32 v%d, v30, 5, v29" % (reg + 2 * u))
                    a("v_add_u32 v%d, %d, v%d" % (reg + 2 * u + 1, WIN, reg + 2 * u))
                reg += 2 * nreg
            for u in range(nun):
                amap[(si, u)] = (done[rs] + 2 * (u % nreg), off + (u // nreg) * 64, rs)
        for k in range(24, 31):
            a("v_mov_b32 v%d, 0" % k)
        return amap

    def reads(var, amap, slot, st):
        win = slot // 2
        base = (slot % 2) * G1_STAGE
        xs = ["ds_read_b128 %s, v%d offset:%d" % (R("a", xfrag(st, tm), 4), 8 + win, base + (tm >> 1) * 2048 + (tm & 1) * 256)
              for tm in range(8)]
        ws = []
        for tn, key in enumerate(G1_TILES[var]):
            reg, imm, rs = amap[key]
            for rd in range(2):
                off = base + imm + 16 * rd * rs
                ws.append("ds_read_b64_tr_b16 %s, v%d offset:%d" % (R("a", wfrag(st, tn) + 2 * rd, 2), reg + win, off))
        return ws[:2] + xs + ws[2:]

    def mfmas(st):
        out = []
        for tn in range(10):
            for tm in range(8):
                k, r = acc(tn, tm)
                out.append("v_mfma_f32_16x16x32_bf16 %s, %s, %s, %s" % (
                    R(k, r, 4), R("a", wfrag(st, tn), 4), R("a", xfrag(st, tm), 4), R(k, r, 4)))
        return out

    def stage(var, amap, slot, dma, vm, last=False):
        st = slot & 1
        fl = {-1: ["s_waitcnt lgkmcnt(0)"]}
        if not last:
            fl[1] = ["s_waitcnt vmcnt(%d)" % vm, "s_barrier"]
            if dma and slot < 3:
                fl[0] = ["s_cmp_eq_u32 s61, 7", "s_cbranch_scc0 L_g1_ft%d_%d" % (var, slot),
                         "s_waitcnt vmcnt(%d)" % [8, 15, 22][slot], "L_g1_ft%d_%d:" % (var, slot)]
            for g, r in enumerate(reads(var, amap, (slot + 1) % G1_NST, st ^ 1)):
                fl.setdefault(2 + 2 * g, []).append(r)
        else:
            fl[1] = ["s_barrier"]
        if dma:
            for g, d in enumerate(dma_list(slot)):
                fl.setdefault(5 + 4 * g, []).append(d)
        interleave(a, mfmas(st), fl)

    GN, PN = 11, 2
    a("s_cmp_eq_u32 s77, 2")
    a("s_cbranch_scc1 L_g1_w2")
    for var in (1, 2):
        if var == 2:
            a.label("L_g1_w2")
        amap = addr_setup(var)
        a("s_waitcnt vmcnt(12)")
        a("s_barrier")
        stamp(a, 1)
        for r in reads(var, amap, 0, 0):
            a(r)
        a("s_mov_b32 s61, 7")
        a.label("L_g1_loop%d" % var)
        for slot in range(4):
            stage(var, amap, slot, True, 2 * GN + PN)
        a("s_sub_u32 s61, s61, 1")
        a("s_cmp_lg_u32 s61, 0")
        a("s_cbranch_scc1 L_g1_loop%d" % var)
        srd(a, 24, 10, 11, FLAG_BYTES, WS_FLAG)
        srd(a, 36, 70, 71, 256)
        a("v_and_b32 v7, 7, v0")
        a("v_lshlrev_b32 v7, 5, v7")
        a("s_mov_b32 s40, 0")
        a(flag_load(36, 40, 3, 7, 1))
        a("v_lshlrev_b32 v1, 3, v0")
        a("s_lshl_b32 s28, s3, 9")
        a(flag_load(24, 28, 4, 1, 2))
        code_pf(a, "g1%d" % var, "L_code_a", "L_code_b", 28, 6, back=(var == 2))
        NX = 2 + CODE_PF_N
        stage(var, amap, 0, False, 2 * GN + PN + NX)
        stage(var, amap, 1, False, GN + PN + NX)
        stage(var, amap, 2, False, 0)
        a("v_and_b32 v1, 31, v0")
        a("v_lshlrev_b32 v1, 2, v1")
        a("s_lshl_b32 s28, s3, 7")
        a("s_add_u32 s28, s28, %d" % FX)
        a(flag_load(24, 28, 2, 1, 1))
        stage(var, amap, 3, False, 0, last=True)
        if var == 1:
            a.label("L_code_a")
        stamp(a, 2)
        a("""
        s_getreg_b32 s17, hwreg(HW_REG_XCC_ID, 0, 4)
        s_add_u32 s17, s17, 1
        s_waitcnt vmcnt(%d)
        v_cmp_ne_u32 s[32:33], s17, v2   ; s[32:33] == 0 <=> the whole group shares this die's L2
        v_cmp_ne_u32 vcc, 32, v3         ; (the table is valid only if every workgroup had arrived before it was read)
        s_nop 1
        s_or_b64 s[32:33], s[32:33], vcc
        """ % (1 if STAMP else 0))
        flag_wait(a, "all%d" % var, 36, 40, 3, 7, 1, 63, val="32")
        a("s_mov_b32 s72, 0x%x" % f32(-math.log2(math.e)))
        a("s_mov_b32 s73, 0x%x" % f32(DH ** -0.5 * math.log2(math.e)))
        a("""
        s_lshl_b32 s74, s13, 3
        s_lshl_b32 s17, s15, 2
        s_add_u32 s74, s74, s17          ; first global m32 tile of this wave
        """)
        own_flags(a)
        a("""
        s_mov_b32 s91, s31
        s_mov_b32 s92, s28
        s_or_b32 s93, s32, s33
        s_lshl_b32 s28, s3, 9
        v_lshlrev_b32 v1, 3, v0
        """)
        nq = 1 if var == 1 else 3
        ng = 10 - 2 * nq
        a("s_cmp_ge_u32 s63, 32")
        a("s_cbranch_scc1 L_g1_ns%d" % var)
        for tn in range(ng, 10):
            for tm in range(8):
                k, r = acc(tn, tm)
                for e in range(4):
                    a("v_mul_f32 v%d, s73, v%d" % (r + e, r + e))
        a.label("L_g1_ns%d" % var)
        for q in range(nq):
            for tm in range(8):
                _, r0 = acc(ng + 2 * q, tm)
                _, r1 = acc(ng + 2 * q + 1, tm)
                a("v_cvt_pk_bf16_f32 v%d, v%d, v%d" % (r0, r0, r0 + 1))
                a("v_cvt_pk_bf16_f32 v%d, v%d, v%d" % (r0 + 1, r0 + 2, r0 + 3))
                a("v_cvt_pk_bf16_f32 v%d, v%d, v%d" % (r0 + 2, r1, r1 + 1))
                a("v_cvt_pk_bf16_f32 v%d, v%d, v%d" % (r0 + 3, r1 + 2, r1 + 3))
        a("s_cmp_eq_u64 s[32:33], 0")
        a("s_cbranch_scc1 L_g1_qf%d" % var)
        for fl_ in (" sc1", ""):
            if not fl_:
                a.label("L_g1_qf%d" % var)
            for q in range(nq):
                a("s_add_u32 s75, s63, %d" % q)
                a("s_lshl_b32 s76, s75, 6")
                a("s_add_u32 s76, s76, s74")
                a("s_lshl_b32 s76, s76, 11")
                for tm in range(8):
                    _, r0 = acc(ng + 2 * q, tm)
                    off = (tm & 1) * 256 + ((tm >> 1) & 1) * 2048
                    if tm == 4:
                        a("s_add_u32 s76, s76, 4096")
                    a("buffer_store_dwordx4 %s, v22, s[64:67], s76 offen offset:%d%s" % (R("v", r0, 4), off, fl_))
            if fl_:
                a("s_branch L_g1_qd%d" % var)
        a.label("L_g1_qd%d" % var)
        free = [acc(9, tm)[1] for tm in range(8)]
        groups = list(reversed(range(ng // 4)))
        nst = 0
        flag_at = 2
        poll_at = 12 if var == 1 else 6
        a("s_lshr_b32 s75, s62, 5")
        a("s_add_u32 s75, s75, 32")
        a("s_lshl_b32 s75, s75, 11")
        a("s_mul_i32 s90, s74, %d" % ACT_MT)
        a("s_add_u32 s90, s90, s75")
        for fg in groups:
            for tm in range(8):
                regs = []
                fi = 0
                for j in range(4):
                    k, r = acc(4 * fg + j, tm)
                    if k == "a":
                        r2 = free[(4 * (tm & 1) + fi) % 8]
                        fi += 1
                        for e in range(4):
                            a("v_accvgpr_read_b32 v%d, a%d" % (r2 + e, r + e))
                        r = r2
                    regs.append(r)
                g0, u0, g1, u1 = regs
                gs = [g0 + e for e in range(4)] + [g1 + e for e in range(4)]
                us = [u0 + e for e in range(4)] + [u1 + e for e in range(4)]
                for x in gs:
                    a("v_mul_f32 v%d, s72, v%d" % (x, x))
                for x in gs:
                    a("v_exp_f32 v%d, v%d" % (x, x))
                for x in gs:
                    a("v_add_f32 v%d, 1.0, v%d" % (x, x))
                for x in gs:
                    a("v_rcp_f32 v%d, v%d" % (x, x))
                for x, y in zip(gs, us):
                    a("v_mul_f32 v%d, v%d, v%d" % (x, x, y))
                for e in range(4):
                    a("v_cvt_pk_bf16_f32 v%d, v%d, v%d" % (u0 + e, gs[2 * e], gs[2 * e + 1]))
                for e in range(4):
                    a("v_accvgpr_write_b32 a%d, v%d" % (128 + 4 * (8 * fg + tm) + e, u0 + e))
                nst += 1
                if nst == flag_at:
                    a("s_waitcnt vmcnt(0)")
                    flag_set(a, 24, 29, 2, local_tag="q%d" % var)
                if nst == poll_at:
                    a(flag_load(24, 28, 4, 1, 2))
        a("v_mov_b32 v216, v22")
        a("v_mov_b32 v217, v22" if var == 1 else "v_mov_b32 v217, 0x7ff00000")
        stamp(a, 3)
        flag_wait(a, "q%d" % var, 24, 28, 4, 1, 2, 1 if STAMP else 0)
        if var == 1:
            a("s_branch L_at_begin")
    a.label("L_at_begin")


AT_BASE = 98304
AT_STAGE = 16384
AT_NS = 3
AT_PRIV = AT_STAGE * AT_NS


def phase_attn(a, g2):
    Q = [16, 24]
    NEGM = 32
    SB = [48, 64]
    O = [80, 96]
    P = 112
    KF = [120, 128]
    VF = [136, 144]
    L = [152, 156]
    ONES = 160
    T = 164
    PFD = 176
    stamp(a, 4)
    a("""
    s_load_dwordx2 s[4:5], s[0:1], %d
    s_load_dwordx2 s[6:7], s[0:1], %d
    s_load_dwordx2 s[8:9], s[0:1], %d
    s_load_dwordx2 s[16:17], s[0:1], %d
    s_lshl_b32 s19, s3, 2
    s_add_u32 s12, s12, s19          ; head
    s_mov_b32 s46, s13               ; qb
    s_lshl_b32 s13, s13, 3
    s_lshl_b32 s15, s14, 1
    s_add_u32 s13, s13, s15          ; first q m-tile of this wave
    v_lshlrev_b32 v1, 4, v0          ; lane*16
    """ % (KA_WO, KA_WD, KA_X, KA_OUT))
    srd(a, 20, 10, 11, QKV_BYTES, WS_QKV)
    a("""
    s_add_u32 s19, s12, 32
    s_lshl_b32 s19, s19, 17
    s_lshl_b32 s18, s14, 11
    s_add_u32 s19, s19, s18
    v_add_u32 v2, s19, v1
    s_add_u32 s19, s19, 0x400000
    v_lshrrev_b32 v8, 5, v0
    v_and_b32 v9, 31, v0
    v_lshlrev_b32 v10, 2, v8
    v_xor_b32 v11, v9, v10
    v_lshlrev_b32 v11, 4, v11
    v_lshlrev_b32 v12, 9, v8
    v_add3_u32 v3, v11, v12, s19
    v_xor_b32 v11, 0x80, v11
    v_add3_u32 v6, v11, v12, s19
    s_mov_b32 s31, 0
    s_lshl_b32 s19, s2, 2
    s_add_u32 s19, s19, s14
    s_lshl_b32 s19, s19, 10
    v_add_u32 v7, s19, v1
    s_mov_b32 s44, 0
    s_mov_b32 s45, 0
    s_waitcnt lgkmcnt(0)
    """)

    def dma(slot):
        b = AT_BASE + slot * AT_STAGE
        out = ["s_add_u32 m0, s18, %d" % b,
               "buffer_load_dwordx4 v2, s[20:23], s31 offen sc1 lds",
               "buffer_load_dwordx4 v2, s[20:23], s31 offen offset:1024 sc1 lds",
               "s_add_u32 m0, s18, %d" % (b + 8192),
               "buffer_load_dwordx4 v3, s[20:23], s31 offen sc1 lds",
               "buffer_load_dwordx4 v6, s[20:23], s31 offen offset:1024 sc1 lds\ns_add_u32 s31, s31, 8192\ns_and_b32 s31, s31, 0x1ffff"]
        if slot == 0:
            out.append("buffer_load_dwordx4 %s, v7, s[36:39], s44 offen\ns_add_u32 s44, s44, 0x100000" % R("v", PFD, 4))
        else:
            out.append("buffer_load_dwordx4 %s, v7, s[40:43], s45 offen\ns_add_u32 s45, s45, 0x100000" % R("v", PFD, 4))
        return out
    srd(a, 36, 4, 5, 0)
    srd(a, 40, 6, 7, 0)
    for s in dma(0):
        a(s)
        if "m0" in s:
            a("s_nop 0")
    a("""
    s_lshl_b32 s19, s12, 6
    s_add_u32 s19, s19, s13
    s_lshl_b32 s19, s19, 11
    """)
    for q in range(2):
        for s in range(2):
            a("buffer_load_dwordx4 %s, v1, s[20:23], s19 offen offset:%d sc1" % (R("v", Q[q] + 4 * s, 4), q * 2048 + s * 1024))
    for st in range(1, AT_NS):
        for s in dma(st):
            a(s)
            if "m0" in s:
                a("s_nop 0")
    a("s_mov_b32 s38, 0x%x" % (D * D * 2))
    a("s_mov_b32 s42, 0x%x" % (F * D * 2))
    a("s_mov_b32 s44, 0")
    a("s_mov_b32 s45, 0")
    a("""
    v_bfe_u32 v8, v0, 4, 1           ; s (d half)
    v_and_b32 v9, 3, v0              ; c
    v_lshrrev_b32 v10, 5, v0         ; hh'
    v_bfe_u32 v11, v0, 2, 2          ; r
    v_lshl_add_u32 v11, v10, 2, v11
    v_lshlrev_b32 v12, 2, v9
    v_xor_b32 v13, v11, v12
    v_xor_b32 v14, 8, v13
    v_lshlrev_b32 v8, 3, v8
    v_lshl_add_u32 v8, v9, 9, v8
    v_add_u32 v8, %d, v8
    v_lshl_add_u32 v4, v13, 4, v8
    v_lshl_add_u32 v5, v14, 4, v8
    v_add_u32 v15, %d, v1            ; K read address
    v_bfe_u32 v8, v0, 2, 1
    v_bfe_u32 v9, v0, 4, 1
    v_cmp_eq_u32 vcc, v8, v9
    v_mov_b32 v8, 0x3f803f80
    s_nop 1
    """ % (AT_BASE, AT_BASE))
    for e in range(4):
        a("v_cndmask_b32 v%d, 0, v8, vcc" % (ONES + e))
    for q in range(2):
        for e in range(16):
            a("v_mov_b32 v%d, 0" % (O[q] + e))
        for e in range(4):
            a("v_mov_b32 v%d, 0" % (L[q] + e))
    for e in range(4):
        a("v_mov_b32 v%d, 0" % (P + 4 + e))
        a("v_mov_b32 v%d, 0" % (VF[1] + 4 + e))
    g2.setup(a)

    def kread(kf, off, s, areg=15):
        return "ds_read_b128 %s, v%d offset:%d" % (R("v", kf + 4 * s, 4), areg, off + s * 1024)

    def vread(vf, off, u, rd):
        return "ds_read_b64_tr_b16 %s, v%d offset:%d" % (R("v", vf + 4 * u + 2 * rd, 2), 4 + rd, off + u * 256)

    def koff(i):
        i %= 4 * AT_NS
        return (i // 4) * AT_STAGE + (i % 4) * 2048

    def qk(dst, kf, q, s, c):
        return "v_mfma_f32_32x32x16_bf16 %s, %s, %s, %s" % (R("v", dst, 16), R("v", kf + 4 * s, 4), R("v", Q[q] + 4 * s, 4), c)

    def pv(q, vf, u):
        return "v_mfma_f32_32x32x16_bf16 %s, %s, %s, %s" % (R("v", O[q], 16), R("v", vf + 4 * u, 4), R("v", P + 4 * u, 4), R("v", O[q], 16))

    def ls(q, u):
        return "v_mfma_f32_16x16x32_bf16 %s, %s, %s, %s" % (R("v", L[q], 4), R("v", ONES, 4), R("v", P + 4 * u, 4), R("v", L[q], 4))

    def rowmax(sb, dst, first=True):
        if first:
            a("v_max3_f32 v%d, v%d, v%d, v%d" % (dst, sb, sb + 1, sb + 2))
            rest = list(range(3, 16))
        else:
            rest = list(range(16))
        while len(rest) >= 2:
            a("v_max3_f32 v%d, v%d, v%d, v%d" % (dst, dst, sb + rest[0], sb + rest[1]))
            rest = rest[2:]
        if rest:
            a("v_max_f32 v%d, v%d, v%d" % (dst, dst, sb + rest[0]))

    def crossmax(dst):
        a("v_mov_b32 v%d, v%d" % (dst + 1, dst))
        a("s_nop 1")
        a("v_permlane32_swap_b32 v%d, v%d" % (dst, dst + 1))
        a("s_nop 1")
        a("v_max_f32 v%d, v%d, v%d" % (dst, dst, dst + 1))

    GN = 5
    a("s_waitcnt vmcnt(%d)" % ((AT_NS - 1) * GN))
    a("s_barrier")
    stamp(a, 5)
    a(kread(KF[0], 0, 0))
    a(kread(KF[0], 0, 1))
    for u in range(2):
        for rd in range(2):
            a(vread(VF[0], 8192, u, rd))
    a("s_waitcnt lgkmcnt(4)")
    for q in range(2):
        a(qk(SB[q], KF[0], q, 0, "0"))
        a(qk(SB[q], KF[0], q, 1, R("v", SB[q], 16)))
    a("s_nop 15")
    rowmax(SB[0], T)
    rowmax(SB[1], T, first=False)
    crossmax(T)
    a("v_sub_f32 v%d, 0, v%d" % (T, T))
    for e in range(16):
        a("v_mov_b32 v%d, v%d" % (NEGM + e, T))
    a("s_nop 1")
    a(qk(SB[0], KF[0], 0, 0, R("v", NEGM, 16)))
    a(qk(SB[0], KF[0], 0, 1, R("v", SB[0], 16)))
    a("s_nop 7")
    a("s_nop 3")

    def slot(t, i, vm=None, dm=()):
        q = t & 1
        sc, sn = SB[q], SB[q ^ 1]
        kn = KF[(i + q) & 1]
        vprev = VF[(i - 1 + q) & 1]
        vcur = VF[i & 1]
        nk, nv = KF[(i + 1) & 1], VF[(i + 1) & 1]
        o1 = koff(i + 1)
        if q == 0:
            rds = [kread(nk, o1, 0), kread(nk, o1, 1), vread(nv, o1 + 8192, 0, 0)]
        else:
            rds = [vread(nv, o1 + 8192, 0, 1), vread(nv, o1 + 8192, 1, 0), vread(nv, o1 + 8192, 1, 1)]

        def ex(lo, hi):
            for e in range(lo, hi):
                a("v_exp_f32 v%d, v%d" % (sc + e, sc + e))

        def cv(u):
            for e in range(4):
                a("v_cvt_pk_bf16_f32 v%d, v%d, v%d" % (P + 4 * u + e, sc + 8 * u + 2 * e, sc + 8 * u + 2 * e + 1))

        def dd(k):
            if k < len(dm):
                a(dm[k])
        a("s_waitcnt lgkmcnt(%d)" % (0 if q == 0 else 1))
        a(qk(sn, kn, q ^ 1, 0, R("v", NEGM, 16)))
        if vm is not None:
            a("s_waitcnt vmcnt(%d)" % vm)
            a("s_barrier")
        a(rds[0])
        ex(0, 2)
        dd(0)
        ex(2, 4)
        a(pv(q ^ 1, vprev, 1))
        a(rds[1])
        ex(4, 6)
        dd(1)
        ex(6, 8)
        a(ls(q ^ 1, 1))
        dd(2)
        cv(0)
        dd(3)
        a(qk(sn, kn, q ^ 1, 1, R("v", sn, 16)))
        a(rds[2])
        ex(8, 10)
        dd(4)
        ex(10, 12)
        a(pv(q, vcur, 0))
        ex(12, 14)
        dd(5)
        ex(14, 16)
        a(ls(q, 0))
        dd(6)
        cv(1)

    def hstore(k):
        fg, tm = k >> 3, k & 7
        s = "buffer_store_dwordx4 %s, v%d, s[%d:%d], s90 offen offset:%d sc1" % (
            R("a", 128 + 4 * k, 4), 216 + fg, g2.ACT, g2.ACT + 3, fg * 2048 + (tm & 1) * 256)
        return s

    def body(stages, mode="loop"):
        for sabs in stages:
            sidx = sabs % AT_NS
            g2ops = []
            if mode == "final" and sabs == 15:
                g2.fh_check(a)
                for st in range(g2.FIRST):
                    g2ops += g2.wdma(st) + g2.aloads(st)
            for kt in range(4):
                i = sidx * 4 + kt
                last = kt == 3
                vm = (AT_NS - 2) * GN + 1
                d0, d1 = [], []
                if mode == "first" and sidx < 2:
                    j = 2 * sidx + (kt >> 1)
                    ks = [2 * j + (kt & 1), 8 + 2 * j + (kt & 1)]
                    d1 = [hstore(ks[0]), hstore(ks[1]) + ("\ns_add_u32 s90, s90, %d" % ACT_MT if kt & 1 else "")]
                    vm += 6 if sidx == 0 else 14
                if mode == "first" and sidx == 2:
                    vm = 0
                if last:
                    d0 = dma(sidx)
                if mode == "final":
                    if sabs >= 13:
                        d0 = []
                    if sabs == 13:
                        vm = GN + 1 if last else vm
                    if sabs == 14:
                        vm = 2
                        if kt == 0:
                            d0 = [g2.fh_load()]
                    if sabs == 15:
                        vm = None
                        n = (len(g2ops) + 7) // 8
                        d0 = g2ops[(2 * kt) * n: (2 * kt + 1) * n]
                        d1 = g2ops[(2 * kt + 1) * n: (2 * kt + 2) * n]
                        assert n <= 7
                slot(2 * i, i, vm=vm if last else None, dm=d0)
                slot(2 * i + 1, i, dm=d1)
                if mode == "first" and sidx == 2 and last:
                    flag_set(a, 24, 30, 8)
    body(range(3), "first")
    a("s_mov_b32 s47, 3")
    a.label("L_at_loop")
    body(range(3))
    a("s_sub_u32 s47, s47, 1")
    a("s_cmp_lg_u32 s47, 0")
    a("s_cbranch_scc1 L_at_loop")
    body(range(12, 16), "final")
    a("s_waitcnt lgkmcnt(0)")
    a(pv(1, VF[1], 1))
    a(ls(1, 1))
    stamp(a, 6)
    a("s_nop 15")
    a("s_mul_i32 s19, s13, %d" % ACT_MT)
    a("s_lshl_b32 s33, s12, 11")
    a("s_add_u32 s33, s33, s19")
    for q in range(2):
        a("v_mov_b32 v%d, 0" % T)
        for e in range(16):
            a("v_fma_f32 v%d, v%d, 0, v%d" % (T, O[q] + e, T))
        a("v_add_f32 v%d, v%d, v%d" % (T, T, L[q]))
        a("v_mov_b32 v%d, 0x%x" % (T + 1, f32(2.0 ** 64)))
        a("v_mov_b32 v%d, 0x%x" % (T + 2, f32(2.0 ** -64)))
        a("v_cmp_nlt_f32 vcc, v%d, v%d" % (T, T + 1))
        a("v_cmp_ngt_f32 s[34:35], v%d, v%d" % (T, T + 2))
        a("s_nop 1")
        a("s_or_b64 vcc, vcc, s[34:35]")
        a("s_cbranch_scc1 L_at_slow%d" % q)
        a.label("L_at_fin%d" % q)
        a("v_rcp_f32 v%d, v%d" % (T, L[q]))
        a("s_nop 0")
        for e in range(16):
            a("v_mul_f32 v%d, v%d, v%d" % (O[q] + e, O[q] + e, T))
        for e in range(8):
            a("v_cvt_pk_bf16_f32 v%d, v%d, v%d" % (O[q] + e, O[q] + 2 * e, O[q] + 2 * e + 1))
        a("buffer_store_dwordx4 %s, v1, s[%d:%d], s33 offen sc1" % (R("v", O[q], 4), g2.ACT, g2.ACT + 3))
        a("buffer_store_dwordx4 %s, v1, s[%d:%d], s33 offen offset:1024 sc1" % (R("v", O[q] + 4, 4), g2.ACT, g2.ACT + 3))
        if q == 0:
            a("s_add_u32 s33, s33, %d" % ACT_MT)
    a("s_mov_b32 s30, s91")
    a("s_branch L_g2_begin")
    M = NEGM
    for q in range(2):
        a.label("L_at_slow%d" % q)
        a("""
        s_waitcnt vmcnt(0) lgkmcnt(0)
        s_lshl_b32 s32, s14, 12
        s_add_u32 s32, s32, %d           ; private offset inside the attention region
        v_subrev_u32 v8, s18, v2
        v_subrev_u32 v9, s18, v3
        v_subrev_u32 v10, s18, v6
        v_add_u32 v11, s32, v15
        v_mov_b32 v12, v4
        v_mov_b32 v13, v5
        v_add_u32 v4, s32, v4
        v_add_u32 v5, s32, v5
        s_add_u32 s32, s32, %d
        v_mov_b32 v%d, 0xff800000
        s_mov_b32 s31, 0
        """ % (AT_PRIV, AT_BASE, M))
        for e in range(16):
            a("v_mov_b32 v%d, 0" % (O[q] + e))
        for e in range(4):
            a("v_mov_b32 v%d, 0" % (L[q] + e))
        a.label("L_at_sloop%d" % q)
        a("""
        s_mov_b32 m0, s32
        s_nop 0
        buffer_load_dwordx4 v8, s[20:23], s31 offen sc1 lds
        buffer_load_dwordx4 v8, s[20:23], s31 offen offset:1024 sc1 lds
        s_add_u32 m0, s32, 2048
        s_nop 0
        buffer_load_dwordx4 v9, s[20:23], s31 offen sc1 lds
        buffer_load_dwordx4 v10, s[20:23], s31 offen offset:1024 sc1 lds
        s_waitcnt vmcnt(0)
        """)
        a(kread(KF[0], 0, 0, areg=11))
        a(kread(KF[0], 0, 1, areg=11))
        for u in range(2):
            for rd in range(2):
                a(vread(VF[0], 2048, u, rd))
        a("s_waitcnt lgkmcnt(0)")
        sc = SB[0]
        a(qk(sc, KF[0], q, 0, "0"))
        a(qk(sc, KF[0], q, 1, R("v", sc, 16)))
        a("s_nop 15")
        rowmax(sc, T)
        crossmax(T)
        a("v_max_f32 v%d, v%d, v%d" % (T, T, M))
        a("v_mov_b32 v%d, 0xff800000" % (T + 1))
        a("v_cmp_eq_f32 vcc, v%d, v%d" % (T, T + 1))
        a("s_nop 1")
        a("v_cndmask_b32 v%d, v%d, 0, vcc" % (T + 2, T))
        a("v_sub_f32 v%d, v%d, v%d" % (T + 3, M, T + 2))
        a("v_exp_f32 v%d, v%d" % (T + 3, T + 3))
        a("v_mov_b32 v%d, v%d" % (M, T))
        for e in range(16):
            a("v_sub_f32 v%d, v%d, v%d" % (sc + e, sc + e, T + 2))
        for e in range(16):
            a("v_exp_f32 v%d, v%d" % (sc + e, sc + e))
        for e in range(16):
            a("v_mul_f32 v%d, v%d, v%d" % (O[q] + e, O[q] + e, T + 3))
        for e in range(4):
            a("v_mul_f32 v%d, v%d, v%d" % (L[q] + e, L[q] + e, T + 3))
        for u in range(2):
            for e in range(4):
                a("v_cvt_pk_bf16_f32 v%d, v%d, v%d" % (P + 4 * u + e, sc + 8 * u + 2 * e, sc + 8 * u + 2 * e + 1))
        a("s_nop 1")
        a(pv(q, VF[0], 0))
        a(pv(q, VF[0], 1))
        a(ls(q, 0))
        a(ls(q, 1))
        a("s_nop 15")
        a("s_add_u32 s31, s31, 2048")
        a("s_cmp_lt_u32 s31, 0x20000")
        a("s_cbranch_scc1 L_at_sloop%d" % q)
        a("v_mov_b32 v4, v12")
        a("v_mov_b32 v5, v13")
        a("s_branch L_at_fin%d" % q)
    a.label("L_g2_begin")


G2_NS = 8
G2_TA, G2_TB = 32, 40


def rowbase(perm, g, rd):
    return 16 * (g >> 1) + 4 * (g & 1) + 8 * rd if perm == "p32" else 4 * g + 16 * rd


class Gemm2:
    ACT, WS_, XS, OUT, PART = 48, 52, 56, 60, 64
    sA, sW, sL, sTR, sCNT, sTY, sKH, sMH, sMB, sNB, sKEEP = 68, 69, 70, 71, 72, 73, 74, 75, 76, 77, 80
    sFH, sFO, sFP, sPART, sT0, sT1 = 81, 82, 83, 84, 85, 86
    sWO = 88
    VA = 180
    VW = 182
    VT = 190
    VO = 206
    VF = 208
    WF, XR = 16, 80
    FIRST = 4

    def areg(self, slot, tm):
        if slot < 7:
            return R("a", 128 + slot * 16 + tm * 4, 4)
        return R("v", 224 + tm * 4, 4)

    def setup(self, a):
        g = self
        t0, t1 = g.sT0, g.sT1
        v = g.VF + 3
        a("""
        s_and_b32 s{t0}, s2, 7
        s_lshr_b32 s{t1}, s2, 3
        s_and_b32 s{ty}, s{t1}, 1
        s_lshr_b32 s{t1}, s{t1}, 1
        s_lshr_b32 s{mb}, s{t0}, 1
        s_lshl_b32 s{mb}, s{mb}, 2
        s_lshr_b32 s{cnt}, s{t1}, 2
        s_add_u32 s{mb}, s{mb}, s{cnt}
        s_and_b32 s{nb}, s{t0}, 1
        s_lshl_b32 s{nb}, s{nb}, 2
        s_and_b32 s{cnt}, s{t1}, 3
        s_add_u32 s{nb}, s{nb}, s{cnt}
        s_and_b32 s{kh}, s14, 1
        s_lshr_b32 s{mh}, s14, 1
        s_mov_b32 s{wo}, s4
        s_mov_b32 s{wo1}, s5
        v_lshlrev_b32 v{vf}, 2, v0
        v_lshlrev_b32 v{vf2}, 4, v0
        """.format(t0=t0, t1=t1, ty=g.sTY, mb=g.sMB, nb=g.sNB, cnt=g.sCNT, kh=g.sKH, mh=g.sMH, wo=g.sWO, wo1=g.sWO + 1,
                   vf=g.VF, vf2=g.VF + 2))
        srd(a, g.ACT, 10, 11, ACT_BYTES, WS_ACT)
        srd(a, g.WS_, 6, 7, F * D * 2)
        srd(a, g.XS, 8, 9, S * D * 2)
        srd(a, g.OUT, 16, 17, S * D * 2)
        srd(a, g.PART, 10, 11, PART_BYTES, WS_PART)
        a("""
        s_cmp_eq_u32 s{ty}, 0
        s_cselect_b32 s{sw}, 0, 0x{wb:x}
        s_mov_b32 s{t0}, 0x{ab:x}
        s_cselect_b32 s{sa}, 0x{aa:x}, s{t0}
        s_cselect_b32 s{xn}, s{xn}, 0
        s_cselect_b32 s{tr}, {ta}, {tb}
        v_lshrrev_b32 v{v}, 4, v0
        v_lshlrev_b32 v{v}, 9, v{v}
        v_and_b32 v{v1}, 15, v0
        v_lshl_add_u32 v{v}, v{v1}, 4, v{v}
        s_lshl_b32 s{t0}, s{mb}, 2
        s_lshl_b32 s{t1}, s{mh}, 1
        s_add_u32 s{t0}, s{t0}, s{t1}
        s_add_u32 s{keep}, s{t0}, s{kh}
        s_lshl_b32 s{t1}, s{kh}, 11
        s_mul_i32 s{t0}, s{keep}, {amt}
        s_add_u32 s{t0}, s{t0}, s{t1}
        v_add_u32 v{va}, s{t0}, v{v}
        s_xor_b32 s{t0}, s{keep}, 1
        s_mul_i32 s{t0}, s{t0}, {amt}
        s_add_u32 s{t0}, s{t0}, s{t1}
        v_add_u32 v{va1}, s{t0}, v{v}
        s_lshl_b32 s{sl}, s14, 12
        ; flag offsets
        s_lshl_b32 s{fh}, s{mb}, 8
        s_add_u32 s{fo}, s{fh}, {FO}
        s_add_u32 s{fh}, s{fh}, {FH}
        s_lshl_b32 s{t0}, s{mb}, 3
        s_add_u32 s{t0}, s{t0}, s{nb}
        s_mov_b32 s{fp}, s92
        s_lshl_b32 s{t0}, s{t0}, 16
        s_lshl_b32 s{t1}, s14, 14
        s_add_u32 s{part}, s{t0}, s{t1}
        ; W dma voffsets
        v_lshrrev_b32 v{v}, 4, v0          ; r
        v_bfe_u32 v{v1}, v0, 1, 3          ; u'
        v_and_b32 v{v2}, 1, v0
        s_lshl_b32 s{t0}, s{nb}, 8
        s_lshl_b32 s{t1}, s{mh}, 16
        s_add_u32 s{t0}, s{t0}, s{t1}
        v_lshlrev_b32 v{v3}, 11, v{v}
        v_add_u32 v{v3}, s{t0}, v{v3}
        """.format(ty=g.sTY, sw=g.sW, wb=G2_TA * 64 * 2048, t0=t0, t1=t1, ab=(16 + G2_TA) * 4096, aa=16 * 4096, sa=g.sA,
                   xn=g.XS + 2, tr=g.sTR, ta=G2_TA // 8 - 1, tb=G2_TB // 8 - 1, v=v, v1=v + 1, v2=v + 2, v3=v + 3,
                   mb=g.sMB, mh=g.sMH, kh=g.sKH, keep=g.sKEEP, amt=ACT_MT, va=g.VA, va1=g.VA + 1, sl=g.sL,
                   fh=g.sFH, fo=g.sFO, fp=g.sFP, part=g.sPART, nb=g.sNB, FO=FO, FH=FH, FP=FP))
        for gg in range(4):
            a("v_xor_b32 v%d, v%d, v%d" % (v + 4, v + 1, v))
            if gg & 1:
                a("v_xor_b32 v%d, 4, v%d" % (v + 4, v + 4))
            a("v_lshl_add_u32 v%d, v%d, 1, v%d" % (v + 4, v + 4, v + 2))
            a("v_lshl_add_u32 v%d, v%d, 4, v%d" % (v + 4, v + 4, v + 3))
            for perm, dst in (("p16", g.VW + gg), ("p32", g.VW + 4 + gg)):
                r0, r1 = rowbase(perm, gg, 0) * 2048 - gg * 1024, rowbase(perm, gg, 1) * 2048 - gg * 1024
                a("s_cmp_eq_u32 s%d, 0" % g.sKH)
                a("s_mov_b32 s%d, %d" % (t0, r1))
                a("s_cselect_b32 s%d, %d, s%d" % (t0, r0, t0))
                a("v_add_u32 v%d, s%d, v%d" % (dst, t0, v + 4))
        a("""
        v_lshrrev_b32 v{v}, 4, v0
        v_bfe_u32 v{v1}, v0, 2, 2
        v_lshl_add_u32 v{v}, v{v}, 2, v{v1}
        v_and_b32 v{v1}, 7, v{v}
        v_lshlrev_b32 v{v}, 8, v{v}
        v_and_b32 v{v2}, 3, v0
        v_lshl_add_u32 v{v}, v{v2}, 3, v{v}
        s_lshl_b32 s{t0}, s{kh}, 13
        v_add_u32 v{v}, s{t0}, v{v}
        """.format(v=v, v1=v + 1, v2=v + 2, t0=t0, kh=g.sKH))
        for tn in range(8):
            a("v_xor_b32 v%d, %d, v%d" % (v + 2, tn, v + 1))
            a("v_lshl_add_u32 v%d, v%d, 5, v%d" % (g.VT + tn, v + 2, v))
            a("v_add_u32 v%d, 0x10000, v%d" % (g.VT + 8 + tn, g.VT + tn))
        a("""
        s_lshl_b32 s{t0}, s{keep}, 16
        s_lshl_b32 s{t1}, s{nb}, 8
        s_add_u32 s{t0}, s{t0}, s{t1}
        v_and_b32 v{v}, 15, v0
        v_lshlrev_b32 v{v}, 11, v{v}
        v_bfe_u32 v{v1}, v0, 4, 1
        v_lshlrev_b32 v{v1}, 5, v{v1}
        v_lshrrev_b32 v{v2}, 5, v0
        v_lshlrev_b32 v{v2}, 4, v{v2}
        v_add3_u32 v{v}, v{v}, v{v1}, v{v2}
        v_add_u32 v{vo}, s{t0}, v{v}
        v_add_u32 v{vo1}, 0x8000, v{vo}
        """.format(t0=t0, t1=t1, keep=g.sKEEP, nb=g.sNB, v=v, v1=v + 1, v2=v + 2, vo=g.VO, vo1=g.VO + 1))
        for k in range(128):
            a("v_accvgpr_write_b32 a%d, 0" % k)

    def fh_load(self):
        return flag_load(24, self.sFH, self.VF + 1, self.VF, 1)

    def wdma(self, slot):
        g = self
        out = ["s_add_u32 m0, s%d, %d" % (g.sL, slot * 16384)]
        for gg in range(4):
            out.append("buffer_load_dwordx4 v%d, s[%d:%d], s%d offen offset:%d lds" % (g.VW + gg, g.WS_, g.WS_ + 3, g.sW, 1024 * gg))
        out[-1] += "\ns_add_u32 s%d, s%d, %d" % (g.sW, g.sW, 64 * 2048)
        return out

    def aloads(self, slot):
        g = self
        out = ["buffer_load_dwordx4 %s, v%d, s[%d:%d], s%d offen offset:%d sc1" % (
            g.areg(slot, tm), g.VA + (tm >> 1), g.ACT, g.ACT + 3, g.sA, 256 * (tm & 1)) for tm in range(4)]
        out[-1] += "\ns_add_u32 s%d, s%d, 4096" % (g.sA, g.sA)
        return out

    def group(self, a, st):
        for i, s in enumerate(self.wdma(st) + self.aloads(st)):
            a(s)
            if i == 0:
                a("s_nop 0")

    def fh_check(self, a):
        flag_wait(a, "h", 24, self.sFH, self.VF + 1, self.VF, 1, 0)

    def main(self, a):
        g = self
        WF, XR = g.WF, g.XR
        stamp(a, 7)
        for st in range(g.FIRST, 6):
            g.group(a, st)

        def wf(st, tn):
            return WF + st * 32 + tn * 4

        def wreads(slot, st):
            out = []
            for tn in range(8):
                for rd in range(2):
                    off = (slot % 4) * 16384 + rd * 4096
                    out.append("ds_read_b64_tr_b16 %s, v%d offset:%d" % (R("v", wf(st, tn) + 2 * rd, 2), g.VT + 8 * (slot // 4) + tn, off))
            return out

        def accr(tm, tn):
            return (tm * 8 + tn) * 4

        xloads = ["buffer_load_dwordx4 %s, v%d, s[%d:%d], 0 offen offset:%d" % (R("v", XR + (tm * 4 + p) * 4, 4), g.VO + tm, g.XS, g.XS + 3, p * 64)
                  for tm in range(2) for p in range(4)]

        def stage(slot, prefetch, vm, last=False, extra=None, late=None):
            st = slot & 1
            mf = []
            fl = {-1: ["s_waitcnt vmcnt(%d) lgkmcnt(0)" % vm]}
            for tm in range(4):
                for tn in range(8):
                    r = accr(tm, tn)
                    mf.append("v_mfma_f32_16x16x32_bf16 %s, %s, %s, %s" % (
                        R("a", r, 4), R("v", wf(st, tn), 4), g.areg(slot, tm), R("a", r, 4)))
            if not last:
                fl[1] = ["s_barrier"]
                trg = [x for x in range(2, 26) if x % 4 != 3]
                for x, r in zip(trg, wreads((slot + 1) % G2_NS, st ^ 1)):
                    fl.setdefault(x, []).append(r)
            ps = (slot + G2_NS - 1) % G2_NS
            vm_ops = (g.wdma(ps) + g.aloads(ps)) if prefetch else (extra or [])
            pos = [2, 3, 7, 11, 15, 19, 23, 27, 30] if len(vm_ops) == 9 else [3, 7, 11, 15, 19, 23, 27, 30]
            for x, d in zip(pos, vm_ops):
                fl.setdefault(x, []).append(d)
            if late:
                fl.setdefault(31, []).append(late)
            interleave(a, mf, fl)

        a("s_waitcnt vmcnt(%d)" % (8 * 6 - 4 + 4 + (2 if STAMP else 0)))
        a("s_barrier")
        stamp(a, 8)
        for r in wreads(0, 0):
            a(r)
        g.group(a, 6)
        a("s_mov_b32 s%d, 0" % g.sCNT)
        a.label("L_g2_loop")
        for slot in range(G2_NS):
            late = None
            if slot == 1:
                a("""
                s_cmp_eq_u32 s{cnt}, 2
                s_cbranch_scc0 L_g2_nosw
                s_cmp_eq_u32 s{ty}, 1
                s_cbranch_scc0 L_g2_nosw
                s_mov_b32 s{w}, s{wo}
                s_mov_b32 s{w1}, s{wo1}
                s_mov_b32 s{w2}, 0x{n:x}
                s_mov_b32 s{sw}, 0
                s_mov_b32 s{sa}, 0
                """.format(cnt=g.sCNT, ty=g.sTY, w=g.WS_, w1=g.WS_ + 1, w2=g.WS_ + 2, wo=g.sWO, wo1=g.sWO + 1, n=D * D * 2,
                           sw=g.sW, sa=g.sA))
                for gg in range(4):
                    a("v_mov_b32 v%d, v%d" % (g.VW + gg, g.VW + 4 + gg))
                flag_wait(a, "o", 24, g.sFO, g.VF + 1, g.VF, 1, 32)
                a.label("L_g2_nosw")
            if slot == 4:
                late = flag_load(24, g.sFO, g.VF + 1, g.VF, 1)
                flag_set(a, 24, 30, g.VF + 3)
            stage(slot, True, 44, late=late)
        a("""
        s_add_u32 s{c}, s{c}, 1
        s_cmp_lt_u32 s{c}, s{tr}
        s_cbranch_scc1 L_g2_loop
        """.format(c=g.sCNT, tr=g.sTR))
        a("v_mov_b32 v%d, 0" % (g.VF + 3))
        for j in range(G2_NS):
            vm = 44 if j <= 1 else (4 + 8 * (6 - j) + 8 if j <= 6 else 8)
            late = None
            if j == 6:
                late = flag_load(24, g.sFP, g.VF + 1, g.VF + 3, 1)
            if j == 7:
                vm += 1
            stage(j, j == 0, vm, last=(j == G2_NS - 1), extra=(xloads if j == 1 else None), late=late)
        stamp(a, 9)
        T = 112
        PD = 16
        a("s_cmp_eq_u32 s%d, 0" % g.sTY)
        a("s_cbranch_scc1 L_g2_red")
        flag_wait(a, "p", 24, g.sFP, g.VF + 1, g.VF + 3, 1, 1 if STAMP else 0)
        for q in range(16):
            if q % 4 == 0 and q:
                a("s_add_u32 s%d, s%d, 4096" % (g.sPART, g.sPART))
            a("buffer_load_dwordx4 %s, v%d, s[%d:%d], s%d offen offset:%d sc1" % (
                R("a", 128 + 4 * q, 4), g.VF + 2, g.PART, g.PART + 3, g.sPART, (q % 4) * 1024))
        a.label("L_g2_red")
        a("""
        s_nop 7
        s_barrier
        s_xor_b32 s{t0}, s14, 1
        s_lshl_b32 s{t0}, s{t0}, 14
        v_add_u32 v{v}, s{t0}, v{l16}
        s_lshl_b32 s{t0}, s14, 14
        v_add_u32 v{v1}, s{t0}, v{l16}
        """.format(t0=g.sT0, v=g.VF + 4, v1=g.VF + 5, l16=g.VF + 2))
        for q in range(16):
            a("ds_write_b128 v%d, %s offset:%d" % (g.VF + 4, R("a", 64 + 4 * q, 4), q * 1024))
        for e in range(64):
            a("v_accvgpr_read_b32 v%d, a%d" % (T + e, e))
        a("s_waitcnt lgkmcnt(0)")
        a("s_barrier")
        for q in range(16):
            a("ds_read_b128 %s, v%d offset:%d" % (R("v", PD + 4 * q, 4), g.VF + 5, q * 1024))
        a("s_cmp_eq_u32 s%d, 0" % g.sTY)
        a("s_cbranch_scc0 L_g2_b")
        a("s_waitcnt vmcnt(0)")
        for blk in range(8):
            x = XR + 4 * blk
            a("v_permlane16_swap_b32 v%d, v%d" % (x, x + 2))
            a("v_permlane16_swap_b32 v%d, v%d" % (x + 1, x + 3))
        a("s_nop 1")
        tv = g.VF + 6
        for q in range(16):
            a("s_waitcnt lgkmcnt(%d)" % (15 - q))
            for e in range(2):
                d = 2 * q + e
                a("v_lshlrev_b32 v%d, 16, v%d" % (tv, XR + d))
                a("v_and_b32 v%d, 0xffff0000, v%d" % (tv + 1, XR + d))
                a("v_add_f32 v%d, v%d, v%d" % (T + 2 * d, T + 2 * d, tv))
                a("v_add_f32 v%d, v%d, v%d" % (T + 2 * d + 1, T + 2 * d + 1, tv + 1))
            for e in range(4):
                a("v_add_f32 v%d, v%d, v%d" % (T + 4 * q + e, T + 4 * q + e, PD + 4 * q + e))
            if q % 4 == 0 and q:
                a("s_add_u32 s%d, s%d, 4096" % (g.sPART, g.sPART))
            a("buffer_store_dwordx4 %s, v%d, s[%d:%d], s%d offen offset:%d sc1" % (
                R("v", T + 4 * q, 4), g.VF + 2, g.PART, g.PART + 3, g.sPART, (q % 4) * 1024))
        a("""
        s_waitcnt vmcnt(0)
        s_barrier
        s_cmp_eq_u32 s14, 0
        s_cbranch_scc0 L_g2_fin
        """)
        flag_set(a, 24, g.sFP, tv)
        a("s_branch L_g2_fin")
        a.label("L_g2_b")
        for q in range(16):
            a("s_waitcnt lgkmcnt(%d)" % (15 - q))
            for e in range(4):
                a("v_add_f32 v%d, v%d, v%d" % (T + 4 * q + e, T + 4 * q + e, PD + 4 * q + e))
        for q in range(16):
            a("s_waitcnt vmcnt(%d)" % (15 - q))
            for e in range(4):
                a("v_accvgpr_read_b32 v%d, a%d" % (PD + e, 128 + 4 * q + e))
            for e in range(4):
                a("v_add_f32 v%d, v%d, v%d" % (T + 4 * q + e, T + 4 * q + e, PD + e))
            for e in range(2):
                a("v_cvt_pk_bf16_f32 v%d, v%d, v%d" % (XR + 2 * q + e, T + 4 * q + 2 * e, T + 4 * q + 2 * e + 1))
        a("s_nop 1")
        for blk in range(8):
            x = XR + 4 * blk
            a("v_permlane16_swap_b32 v%d, v%d" % (x, x + 2))
            a("v_permlane16_swap_b32 v%d, v%d" % (x + 1, x + 3))
        a("s_nop 1")
        for tm in range(2):
            for p in range(4):
                a("buffer_store_dwordx4 %s, v%d, s[%d:%d], 0 offen offset:%d" % (R("v", XR + (tm * 4 + p) * 4, 4), g.VO + tm, g.OUT, g.OUT + 3, p * 64))
        a.label("L_g2_fin")
        stamp(a, 10)
        if STAMP:
            a("s_waitcnt vmcnt(0)")
            stamp(a, 11)


def gen_mega(a):
    name = "mega_kernel"
    kernel_head(a, name)
    a("s_cmp_ge_u32 s2, 256")
    a("s_cbranch_scc0 L_mega_go")
    a("s_endpgm")
    a.label("L_mega_go")
    g2 = Gemm2()
    phase_gemm1(a)
    phase_attn(a, g2)
    g2.main(a)
    a("s_endpgm")
    a.label("L_code_b")
    kernel_desc(a, name, 512, 256, 102)
    return "; @launch kernel=%s grid=(256,1,1) block=(256,1,1) lds=163840" % name


HEADER = """; Kernarg layout for this problem (80 bytes, ptrs only, base s[0:1]):
"""


def main():
    out = sys.argv[1] if len(sys.argv) > 1 else "cdna_kernels/%s.s" % NAME
    a = Asm()
    a.lines.append('.amdgcn_target "amdgcn-amd-amdhsa--gfx950"')
    launches = [gen_mega(a)]
    open(out, "w").write(HEADER + "\n".join(launches) + "\n" + a.text())


if __name__ == "__main__":
    main()
```
